```python
import torch

def _softmax(x, axis=-1):
    return torch.softmax(x, dim=axis)

def _gelu(x):
    return torch.nn.functional.gelu(x, approximate='tanh')

def _silu(x):
    return torch.nn.functional.silu(x)

def _sigmoid(x):
    return torch.sigmoid(x)

def _layernorm(x, axis=-1, eps=1e-05):
    m = x.mean(dim=axis, keepdim=True)
    v = x.var(dim=axis, keepdim=True, unbiased=False)
    return (x - m) / torch.sqrt(v + eps)

def _scatter_add(tgt, idx, src, axis=0):
    return tgt.clone().index_add_(axis, idx, src)

def _segment_sum(src, seg, n):
    out = torch.zeros((n,) + src.shape[1:], dtype=src.dtype)
    return out.index_add_(0, seg, src)

def _pad(x, pw):
    flat = tuple((v for pair in reversed(pw) for v in pair))
    return torch.nn.functional.pad(x, flat)
kernel_name = 'concat_heads__ssm_conv_h3__memory_aug_recurrent_mem_tr__prompt'

def setup_inputs():

    _w = lambda a: (lambda t: t.to(torch.bfloat16) if t.is_floating_point() else t)(torch.as_tensor(a))

    def _A_setup():
        B, S, D = (1, 2048, 512)
        ks = 4
        return {'q': _w((lambda *s: torch.randn(*s, dtype=torch.bfloat16) * 0.05)(B, S, D)), 'k': _w((lambda *s: torch.randn(*s, dtype=torch.bfloat16) * 0.4)(B, S, D)), 'v': _w((lambda *s: torch.randn(*s, dtype=torch.bfloat16) * 0.4)(B, S, D)), 'shift_k': _w((lambda *s: torch.randn(*s, dtype=torch.bfloat16) * 0.4)(D, ks) * 0.5), 'ssm_k': _w((lambda *s: torch.randn(*s, dtype=torch.bfloat16) * 0.4)(D, S) * (1.0 / S ** 0.5)), 'ssm_D': _w((lambda *s: torch.randn(*s, dtype=torch.bfloat16) * 0.4)(D))}
    _A_in = _A_setup()

    def _B_setup():
        B, S, Dm = (1, 2048, 512)
        H, Dh = (32, 128)
        M, seg = (8, 32)
        seg = min(seg, S)
        S = S // seg * seg
        return {'x': _w((lambda *s: torch.randn(*s, dtype=torch.bfloat16) * 0.05)(B, S, Dm)), 'mem0': _w((lambda *s: torch.randn(*s, dtype=torch.bfloat16) * 0.4)(B, M, Dm)), 'Wq': _w((lambda *s: torch.randn(*s, dtype=torch.bfloat16) * 6.4)(Dm, H, Dh) * Dm ** (-0.5)), 'Wk': _w((lambda *s: torch.randn(*s, dtype=torch.bfloat16) * 6.4)(Dm, H, Dh) * Dm ** (-0.5)), 'Wv': _w((lambda *s: torch.randn(*s, dtype=torch.bfloat16) * 0.4)(Dm, H, Dh) * Dm ** (-0.5)), 'Wo': _w((lambda *s: torch.randn(*s, dtype=torch.bfloat16) * 0.4)(H, Dh, Dm) * (H * Dh) ** (-0.5)), 'seg_len': seg}
    _B_in = _B_setup()
    return {'A_q': _A_in['q'], 'A_k': _A_in['k'], 'A_v': _A_in['v'], 'A_shift_k': _A_in['shift_k'], 'A_ssm_k': _A_in['ssm_k'], 'A_ssm_D': _A_in['ssm_D'], 'B_x': _B_in['x'], 'B_mem0': _B_in['mem0'], 'B_Wq': _B_in['Wq'], 'B_Wk': _B_in['Wk'], 'B_Wv': _B_in['Wv'], 'B_Wo': _B_in['Wo'], 'B_seg_len': _B_in['seg_len']}

def reference(A_q, A_k, A_v, A_shift_k, A_ssm_k, A_ssm_D, B_x, B_mem0, B_Wq, B_Wk, B_Wv, B_Wo, B_seg_len):

    def _A_ref(q, k, v, shift_k, ssm_k, ssm_D):
        B, S, D = q.shape
        ks = shift_k.shape[-1]
        k_pad = _pad(k, ((0, 0), (ks - 1, 0), (0, 0)))
        k_shift = torch.zeros_like(k)
        for t in range(ks):
            k_shift = k_shift + k_pad[:, t:t + S, :] * shift_k[:, ks - 1 - t][None, None, :]
        kv = k_shift * v
        L = 2 * S
        kv_pad = _pad(kv, ((0, 0), (0, S), (0, 0)))
        kf_pad = _pad(ssm_k, ((0, 0), (0, S)))
        kv_f = (lambda x, axes=(-2, -1): torch.fft.rfft2(x.float(), dim=axes))(kv_pad[:, None, :, :], axes=(1, 2))
        kf_f = (lambda x, axes=(-2, -1): torch.fft.rfft2(x.float(), dim=axes))(kf_pad[:, None, :], axes=(1, 2))
        kf_f = (lambda x, *d: x.permute(*d))(kf_f, 1, 2, 0)
        y_f = kv_f * kf_f[None, :, :, :]
        y = (lambda x, s, axes=(-2, -1): torch.fft.irfft2(x, s=s, dim=axes).to(torch.bfloat16))(y_f, (1, L), axes=(1, 2))[:, 0, :S, :]
        y = y + kv * ssm_D[None, None, :]
        return q * y

    def _B_ref(x, mem0, Wq, Wk, Wv, Wo, seg_len):
        B, S, Dm = x.shape
        H, Dh = (Wq.shape[1], Wq.shape[2])
        M = mem0.shape[1]
        scale = Dh ** (-0.5)
        n_seg = S // seg_len
        L = M + seg_len
        idx = torch.arange(L)
        mask = (idx[:, None] < M) | (idx[:, None] >= idx[None, :])
        mem = mem0
        outs = []
        for s in range(n_seg):
            xs = x[:, s * seg_len:(s + 1) * seg_len, :].clone()
            h = torch.concatenate([mem, xs], axis=1)
            q = torch.einsum('btd,dhe->bhte', h, Wq)
            k = torch.einsum('btd,dhe->bhte', h, Wk)
            v = torch.einsum('btd,dhe->bhte', h, Wv)
            scores = torch.einsum('bhqe,bhke->bhqk', q, k) * scale
            scores = torch.where(mask[None, None], scores, -1000000000.0)
            p = _softmax(scores, axis=-1)
            o = torch.einsum('bhqk,bhke->bhqe', p, v)
            o = torch.einsum('bhte,hed->btd', o, Wo)
            mem = o[:, :M, :].clone()
            outs.append(o[:, M:, :])
        return torch.concatenate(outs, axis=1)
    a = _A_ref(A_q, A_k, A_v, A_shift_k, A_ssm_k, A_ssm_D)
    b = _B_ref(B_x, B_mem0, B_Wq, B_Wk, B_Wv, B_Wo, B_seg_len)
    return torch.concatenate([a, b], axis=-1)
```

```python
import re

def _regs(tok):
    tok = tok.strip()
    neg = tok.lstrip('-')
    if neg.startswith('abs(') and neg.endswith(')'): neg = neg[4:-1]
    if neg.startswith('|') and neg.endswith('|'): neg = neg[1:-1]
    m = re.fullmatch(r'([vas])(\d+)', neg)
    if m: return [(m.group(1), int(m.group(2)))]
    m = re.fullmatch(r'([vas])\[(\d+):(\d+)\]', neg)
    if m: return [(m.group(1), i) for i in range(int(m.group(2)), int(m.group(3)) + 1)]
    if neg == 'vcc': return [('s', 'vcc')]
    if neg == 'vcc_lo' or neg == 'vcc_hi': return [('s', 'vcc')]
    if neg == 'exec': return [('s', 'exec')]
    if neg == 'm0': return [('s', 'm0')]
    if neg == 'scc': return [('s', 'scc')]
    return []

TRANS = ('v_exp_f32', 'v_log_f32', 'v_rcp_f32', 'v_rsq_f32', 'v_sqrt_f32', 'v_sin_f32', 'v_cos_f32')

class Ins:
    __slots__ = ('op', 'ops', 'mods', 'text', 'wr', 'rd', 'kind', 'passes', 'crd', 'dpp')

def parse(text):
    t = text.split(';')[0].strip()
    m = re.match(r'(\S+)\s*(.*)', t)
    op, rest = m.group(1), m.group(2)
    parts = []
    depth = 0; cur = ''
    for ch in rest:
        if ch in '[(': depth += 1
        if ch in '])': depth -= 1
        if ch == ',' and depth == 0:
            parts.append(cur.strip()); cur = ''
        else: cur += ch
    if cur.strip(): parts.append(cur.strip())
    mods = ''
    if parts:
        sp = parts[-1].split(None, 1)
        if len(sp) == 2 and not parts[-1].startswith('hwreg'):
            parts[-1] = sp[0]; mods = sp[1]
    I = Ins(); I.op = op; I.ops = parts; I.mods = mods; I.text = text
    I.wr = []; I.rd = []; I.kind = 'other'; I.passes = 0; I.crd = []; I.dpp = False
    R = lambda i: _regs(parts[i]) if i < len(parts) else []
    allr = lambda lo: [r for i in range(lo, len(parts)) for r in _regs(parts[i])]
    base = op.replace('_e32', '').replace('_e64', '').replace('_dpp', '').replace('_sdwa', '')
    if op.startswith('v_mfma') or op.startswith('v_smfmac'):
        I.kind = 'mfma'
        I.wr = R(0)
        if op.startswith('v_smfmac'):
            I.rd = R(1) + R(2) + R(3); I.crd = R(0)
        else:
            I.rd = R(1) + R(2); I.crd = R(3)
        I.passes = 8 if '32x32' in op else 4
        if '4x4x4' in op: I.passes = 2
    elif op.startswith('v_'):
        I.kind = 'valu'
        I.dpp = ('_dpp' in op) or any(k in mods for k in ('row_', 'quad_perm', 'wave_', 'row_bcast'))
        if base.startswith('v_cmp'):
            I.wr = R(0); I.rd = allr(1)
            if base.startswith('v_cmpx'): I.wr = I.wr + [('s', 'exec')]
        elif base in ('v_readfirstlane_b32', 'v_readlane_b32'):
            I.wr = R(0); I.rd = allr(1); I.kind = 'valu_rl'
        elif base.startswith('v_permlane') and 'swap' in base:
            I.wr = R(0) + R(1); I.rd = R(0) + R(1); I.kind = 'valu_perm'
        elif base in ('v_add_co_u32', 'v_sub_co_u32', 'v_addc_co_u32', 'v_subb_co_u32', 'v_subrev_co_u32', 'v_mad_u64_u32'):
            I.wr = R(0) + R(1); I.rd = allr(2)
        elif base in ('v_fmac_f32', 'v_pk_fmac_f16', 'v_dot2c_f32_bf16', 'v_writelane_b32', 'v_accvgpr_write_b32x'):
            I.wr = R(0); I.rd = allr(0)
        elif base == 'v_nop':
            pass
        else:
            I.wr = R(0); I.rd = allr(1)
            if base == 'v_cndmask_b32' and len(parts) == 3: I.rd += [('s', 'vcc')]
            if I.dpp and 'bound_ctrl' not in mods: I.rd += R(0)
        if base in TRANS: I.kind = 'trans'
    elif op.startswith('ds_'):
        I.kind = 'ds'
        if op.startswith('ds_read') or op.startswith('ds_bpermute') or op.startswith('ds_permute') or op.startswith('ds_swizzle'):
            I.wr = R(0); I.rd = allr(1)
        else:
            I.rd = allr(0)
    elif op.startswith('buffer_') or op.startswith('global_') or op.startswith('flat_'):
        I.kind = 'vmem'
        if op in ('buffer_wbl2', 'buffer_inv'):
            pass
        elif 'load' in op:
            if 'lds' in mods.split() or 'load_lds' in op:
                I.rd = allr(0) + [('s', 'm0')]
            else:
                I.wr = R(0); I.rd = allr(1)
        elif 'atomic' in op:
            if 'sc0' in mods.split() and op.startswith('global'):
                I.wr = R(0); I.rd = allr(1)
            elif 'sc0' in mods.split():
                I.wr = R(0); I.rd = allr(0)
            else:
                I.rd = allr(0)
        else:
            I.rd = allr(0)
            I.kind = 'vmem_st'
    elif op.startswith('s_'):
        I.kind = 'salu'
        if op.startswith('s_cmp') or op.startswith('s_bitcmp'):
            I.rd = allr(0); I.wr = [('s', 'scc')]
        elif op.startswith('s_cbranch') or op in ('s_branch', 's_barrier', 's_waitcnt', 's_nop', 's_endpgm', 's_sleep', 's_setprio'):
            I.kind = 'sctl'
        elif op.startswith('s_load') or op.startswith('s_memtime') or op.startswith('s_memrealtime') or op.startswith('s_getreg'):
            I.wr = R(0); I.rd = allr(1); I.kind = 'smem' if not op.startswith('s_getreg') else 'salu'
        else:
            I.wr = R(0); I.rd = allr(1)
            if 'saveexec' in op: I.wr = I.wr + [('s', 'exec')]
    return I

class Asm:
    def __init__(self):
        self.lines = []
        self.hist = []
        self.nins = 0
        self.auto = True
    def raw(self, s):
        self.lines.append(s)
    def comment(self, s):
        self.lines.append('  ; ' + s)
    def label(self, name):
        self.flush()
        self.lines.append(name + ':')
        self.hist = []
    def flush(self, n=None):
        need = 0
        dist = 0
        for I in reversed(self.hist):
            if I.kind == 'mfma':
                req = {2: 5, 4: 8, 8: 12, 16: 20}[I.passes]
                need = max(need, req - dist)
            elif I.kind in ('valu', 'trans', 'valu_perm', 'valu_rl'):
                req = 5 if any(r[0] == 's' for r in I.wr) else 2
                need = max(need, req - dist)
            elif I.kind == 'vmem_st':
                need = max(need, 2 - dist)
            dist += self._states(I)
            if dist > 24: break
        self._nop(need)
    def _states(self, I):
        if I.op == 's_nop': return int(I.ops[0], 0) + 1
        return 1
    def _nop(self, n):
        while n > 0:
            k = min(n, 16)
            t = '  s_nop %d' % (k - 1)
            self.lines.append(t); self.hist.append(parse(t)); self.nins += 1
            n -= k
    def _need(self, J):
        need = 0; dist = 0
        rd = set(J.rd); wr = set(J.wr); crd = set(J.crd)
        vrd = {r for r in rd if r[0] in 'va'}
        for I in reversed(self.hist):
            iw = set(I.wr)
            req = 0
            if I.kind == 'mfma':
                p = I.passes
                if J.kind == 'mfma':
                    if iw & rd: req = max(req, {2: 5, 4: 8, 8: 12, 16: 20}[p])
                    if iw & crd:
                        same = (list(I.wr) == list(J.crd)) and I.op == J.op
                        if same: req = max(req, 2 if p == 2 else 0)
                        else: req = max(req, {2: 4, 4: 6, 8: 10, 16: 18}[p])
                    elif iw & wr:
                        req = max(req, {2: 5, 4: 8, 8: 12, 16: 20}[p])
                else:
                    if (iw & rd) or (iw & wr): req = max(req, {2: 5, 4: 8, 8: 12, 16: 20}[p])
                    if J.kind in ('valu', 'trans', 'valu_perm') and (set(I.crd) & wr):
                        req = max(req, {2: 1, 4: 3, 8: 7, 16: 15}[p])
            elif I.kind in ('valu', 'trans', 'valu_perm', 'valu_rl'):
                vw = {r for r in iw if r[0] in 'va'}
                sw = {r for r in iw if r[0] == 's'}
                if J.kind == 'mfma' and (vw & (rd | crd)): req = max(req, 2)
                if J.kind == 'valu_perm' and (vw & rd): req = max(req, 2)
                if J.dpp and (vw & rd): req = max(req, 2)
                if J.kind == 'valu_rl' and (vw & rd): req = max(req, 1)
                if I.kind == 'trans' and J.kind in ('valu', 'valu_perm', 'valu_rl', 'mfma') and (vw & rd): req = max(req, 1 if J.kind != 'mfma' else 2)
                if sw:
                    if J.kind in ('vmem', 'vmem_st') and (sw & rd): req = max(req, 5)
                    if J.kind in ('valu', 'trans', 'valu_perm') and (sw & rd): req = max(req, 2)
                    if J.kind == 'valu_rl' and (sw & rd): req = max(req, 4)
                    if ('s', 'exec') in sw and J.kind == 'mfma': req = max(req, 4)
                    if ('s', 'exec') in sw and J.dpp: req = max(req, 5)
                    pass
            elif I.kind == 'vmem_st':
                if ('x4' in I.op or 'x3' in I.op) and J.kind in ('valu', 'trans', 'valu_perm', 'mfma') :
                    if set(I.rd) & wr: req = max(req, 2)
            elif I.kind == 'salu':
                if ('s', 'm0') in iw and ('s', 'm0') in rd: req = max(req, 1)
            need = max(need, req - dist)
            dist += self._states(I)
            if dist > 24: break
        return need
    def __call__(self, text):
        for ln in text.split('\n'):
            s = ln.strip()
            if not s: continue
            if s.startswith(';'):
                self.lines.append('  ' + s); continue
            if s.endswith(':') and ' ' not in s:
                self.label(s[:-1]); continue
            J = parse(s)
            if self.auto:
                n = self._need(J)
                if n > 0: self._nop(n)
            if self.auto and J.kind == 'sctl' and (J.op.startswith('s_cbranch') or J.op == 's_branch'):
                self.flush()
            self.lines.append('  ' + s)
            self.hist.append(J); self.nins += 1
            if len(self.hist) > 64: self.hist = self.hist[-40:]
    def text(self):
        return '\n'.join(self.lines) + '\n'

def v(i, n=1):
    return 'v%d' % i if n == 1 else 'v[%d:%d]' % (i, i + n - 1)
def a(i, n=1):
    return 'a%d' % i if n == 1 else 'a[%d:%d]' % (i, i + n - 1)
def s(i, n=1):
    return 's%d' % i if n == 1 else 's[%d:%d]' % (i, i + n - 1)
```

```python
import sys
sys.path.insert(0,'gen')
from asmlib import *
from layout import *
import w1
from kfile import *
def w1_kernel():
    A=Asm()
    A(f"""s_cmp_ge_u32 s2, 512
    s_cbranch_scc1 L_end
    s_load_dwordx2 s[8:9], s[0:1], {KA['ws']}
    v_lshrrev_b32 v1, 6, v0
    v_and_b32 v0, 63, v0
    v_readfirstlane_b32 s{w1.S_WVID}, v1
    s_mov_b32 s10, {WS_SIZE}
    s_mov_b32 s11, 0x20000
    s_lshr_b32 s{w1.S_RB}, s2, 5
    s_and_b32 s{w1.S_HH}, s2, 31""")
    w1.w1_setup(A)
    w1.w1_item(A,"")
    A("s_waitcnt vmcnt(0)\nL_end:")
    return A
if __name__=="__main__":
    build_file('w1.s', [("w1_kernel", w1_kernel())], [("w1_kernel",512,256,131072)])
    print("ok")
```

```python
import sys
sys.path.insert(0,'gen')
from asmlib import *
from layout import *
import w2
from kfile import *
def w2_kernel():
    A=Asm()
    A(f"""s_cmp_ge_u32 s2, 32
    s_cbranch_scc1 L_end2
    v_mov_b32 v1, v0
    v_lshrrev_b32 v2, 6, v0
    v_and_b32 v0, 63, v0
    v_readfirstlane_b32 s{w2.S_WVID}, v2
    s_mov_b32 s{w2.S_IT}, s2""")
    w2.w2_item(A,"")
    A("s_waitcnt vmcnt(0)\nL_end2:")
    return A
if __name__=="__main__":
    build_file('w2.s', [("w2_kernel", w2_kernel())], [("w2_kernel",32,256,163840)])
    print("ok")
```

```python
import sys
sys.path.insert(0,'gen')
from asmlib import *
from layout import *
import w3
from kfile import *
def w3_kernel():
    A=Asm()
    A(f"""s_cmp_ge_u32 s2, 512
    s_cbranch_scc1 L_end3
    s_load_dwordx2 s[8:9], s[0:1], {KA['ws']}
    v_lshrrev_b32 v1, 6, v0
    v_and_b32 v0, 63, v0
    v_readfirstlane_b32 s28, v1
    s_mov_b32 s10, {WS_SIZE}
    s_mov_b32 s11, 0x20000
    s_lshl_b32 s3, s2, 2
    s_add_u32 s3, s3, s28
    s_lshr_b32 s{w3.S_SEG}, s3, 5
    s_and_b32 s{w3.S_HH}, s3, 31
    s_waitcnt lgkmcnt(0)""")
    w3.w3_setup(A); w3.w3_bases(A); w3.w3_load_x(A); w3.w3_load_m(A)
    A("s_waitcnt vmcnt(0)")
    w3.w3_compute(A)
    A("s_waitcnt vmcnt(0)\nL_end3:")
    return A
if __name__=="__main__":
    build_file('w3.s', [("w3_kernel", w3_kernel())], [("w3_kernel",512,256,0)])
    print("ok")
```

```python
import sys
sys.path.insert(0,'gen')
from asmlib import *
from layout import *
import w4
from kfile import *
def w4_kernel():
    A=Asm()
    A(f"""s_cmp_ge_u32 s2, 64
    s_cbranch_scc1 L_end4
    s_load_dwordx2 s[8:9], s[0:1], {KA['ws']}
    v_lshrrev_b32 v1, 6, v0
    v_and_b32 v0, 63, v0
    v_readfirstlane_b32 s{w4.S_WVID}, v1
    s_mov_b32 s10, {WS_SIZE}
    s_mov_b32 s11, 0x20000
    s_and_b32 s{w4.S_CB}, s2, 7
    s_lshr_b32 s{w4.S_GRP}, s2, 3
    s_waitcnt lgkmcnt(0)""")
    w4.w4_setup_and_weights(A)
    A(f"s_mov_b32 s{w4.S_IT}, s{w4.S_GRP}")
    A("L_w4l:")
    w4.w4_item(A,"")
    A(f"""s_add_u32 s{w4.S_IT}, s{w4.S_IT}, 8
    s_cmp_lt_u32 s{w4.S_IT}, 128
    s_cbranch_scc1 L_w4l""")
    A("s_waitcnt vmcnt(0)\nL_end4:")
    return A
if __name__=="__main__":
    build_file('w4.s', [("w4_kernel", w4_kernel())], [("w4_kernel",64,256,163840)])
    print("ok")
```

```python
from asmlib import *
from layout import *
def gen_elect(A, L_MISC, S_WV, lab, on_other, force_slow=False, nwg=256):
    xcd = 99 if force_slow else 0
    A(f"""s_cmp_ge_u32 s2, {nwg}
    s_cbranch_scc1 L_end{lab}
    s_load_dwordx2 s[6:7], s[0:1], {KA['dbg']}
    s_load_dwordx2 s[8:9], s[0:1], {KA['ws']}
    s_getreg_b32 s3, hwreg(HW_REG_XCC_ID)
    s_and_b32 s3, s3, 15
    v_lshrrev_b32 v2, 6, v0
    v_mov_b32 v1, v0
    v_and_b32 v0, 63, v0
    v_readfirstlane_b32 s{S_WV}, v2
    s_mov_b32 s10, {WS_SIZE}
    s_mov_b32 s11, 0x20000
    s_waitcnt lgkmcnt(0)
    s_cmp_lg_u32 s{S_WV}, 0
    s_cbranch_scc1 L_norank{lab}
    s_mov_b64 exec, 1
    v_mov_b32 v4, 1
    s_cmp_lg_u32 s3, {xcd}
    s_cbranch_scc1 L_notx{lab}
    v_mov_b32 v3, 0
    global_atomic_add v5, v3, v4, s[6:7] sc0
    s_waitcnt vmcnt(0)
    v_readfirstlane_b32 s4, v5
    s_cmp_lt_u32 s4, 32
    s_cbranch_scc1 L_got{lab}
    L_notx{lab}:
    v_mov_b32 v3, 8
    global_atomic_add v5, v3, v4, s[6:7] sc0
    s_waitcnt vmcnt(0)
    v_readfirstlane_b32 s4, v5
    s_add_u32 s4, s4, 32
    s_cmp_lt_u32 s4, {nwg}
    s_cbranch_scc1 L_got{lab}
    v_mov_b32 v3, 12
    global_store_dword v3, v4, s[6:7] sc1
    s_waitcnt vmcnt(0)
    v_mov_b32 v3, 0
    global_atomic_add v5, v3, v4, s[6:7] sc0
    s_waitcnt vmcnt(0)
    v_readfirstlane_b32 s4, v5
    L_got{lab}:
    v_mov_b32 v3, {L_MISC}
    v_mov_b32 v5, s4
    ds_write_b32 v3, v5
    s_mov_b64 exec, -1
    L_norank{lab}:
    s_waitcnt lgkmcnt(0)
    s_barrier
    v_mov_b32 v3, {L_MISC}
    ds_read_b32 v5, v3
    s_waitcnt lgkmcnt(0)
    v_readfirstlane_b32 s16, v5
    s_barrier
    s_cmp_ge_u32 s16, 32
    s_cbranch_scc1 {on_other}""")
```

```python
def kernel_text(name, A, vgpr=512, accum=256, sgpr=102):
    return f""".globl {name}
.p2align 8
.type {name},@function
{name}:
""" + A.text() + f"""  s_endpgm
"""
def kernel_desc(name, vgpr=512, accum=256, sgpr=102):
    return f""".p2align 6
.amdhsa_kernel {name}
  .amdhsa_next_free_vgpr {vgpr}
  .amdhsa_next_free_sgpr {sgpr}
  .amdhsa_accum_offset {accum}
  .amdhsa_group_segment_fixed_size 0
  .amdhsa_kernarg_size 128
  .amdhsa_user_sgpr_count 2
  .amdhsa_user_sgpr_kernarg_segment_ptr 1
  .amdhsa_system_sgpr_workgroup_id_x 1
.end_amdhsa_kernel
"""
def build_file(path, kernels, launches, header=""):
    t = header
    for (n,g,b,l) in launches:
        t += f"; @launch kernel={n} grid=({g},1,1) block=({b},1,1) lds={l}\n"
    t += '.amdgcn_target "amdgcn-amd-amdhsa--gfx950"\n.text\n'
    for n,A in kernels: t += kernel_text(n,A)
    t += '.section .rodata,"a"\n'
    for n,A in kernels: t += kernel_desc(n)
    open(path,'w').write(t)
```

```python
WS_P    = 0x00000000
WS_MEM  = 0x00040000
WS_FLAG = 0x00050000
WS_KM   = 0x00100000
WS_VM   = 0x00500000
WS_HIST = 0x00D00000
WS_STAMP= 0x00E00000
WS_KV   = 0x01000000
WS_Q    = 0x03000000
WS_O    = 0x04000000
WS_SIZE = 0x10000000
SENT = 0xFFFFFFFF
KA = dict(A_q=0, A_k=8, A_v=16, A_shift=24, A_ssm=32, A_D=40, B_x=48, B_mem0=56, Wq=64, Wk=72, Wv=80, Wo=88, seg=96, out=104, dbg=112, ws=120)
```

```python
from asmlib import *
from layout import *

S_WS   = 8
S_W    = 12
S_H    = 16
S_WV   = 17
S_STEP = 18
S_GSLOT= 19
S_PSLOT= 20
S_CSLOT= 21
S_TAG  = 22
S_TAGM = 23
S_KVOFF= 24
S_T0   = 25
S_T1   = 26
S_T2   = 27
S_T3   = 28
S_KMOFF= 29
S_SC   = 30
S_HIST = 31
S_ST   = 40

V_LANE=0; V_IDX=1; V_BSEL=2; V_RSEL=4
V_PST=8; V_PLD=9; V_PUB=10; V_GAT=11; V_L16=12; V_MW=13
V_SPX=14; V_SPM=15; V_SPR=16; V_SPR2=17; V_OXW=18; V_KV=19; V_WV=20; V_KMA=21; V_VMA=22; V_SENT=23
V_ONES=24
V_MA=28
V_AQ=60; V_AK=68; V_AV=76
V_KX=84; V_VX=92
V_WB=100
V_T=124
A_WQ=0; A_WK=128
V_WO=128
L_WV=0; L_MEM=131072; L_SP=L_MEM+8192; SP_PITCH=44*4; SP_W=8*SP_PITCH
L_OX=L_SP+4*SP_W+64; L_OX=(L_OX+1023)//1024*1024
L_DUMP=L_OX+2048
L_MISC=L_DUMP+2048
LDS_BYTES=163840

def stamp(A, i, on):
    if not on: return
    A(f"""s_memtime s[60:61]
    s_waitcnt lgkmcnt(0)
    s_sub_u32 s62, s60, s63
    s_add_u32 s{S_ST+i}, s{S_ST+i}, s62
    s_mov_b32 s63, s60""")

def gen_prologue_addrs(A):
    A.comment("lane constants")
    A(f"""v_and_b32 v28, 15, v0
    v_lshrrev_b32 v29, 4, v0""")
    A(f"""v_bfe_u32 v30, v28, 1, 1
    v_mov_b32 v31, 0x4444
    v_mov_b32 v32, 0xeeee
    v_cmp_eq_u32 vcc, 1, v30
    v_cndmask_b32 v{V_IDX}, v31, v32, vcc""")
    A(f"""v_and_b32 v30, 7, v28
    v_lshrrev_b32 v31, 1, v30
    v_and_b32 v32, 1, v28
    v_lshlrev_b32 v32, 4, v32
    v_mov_b32 v33, 0x3f80
    v_lshlrev_b32 v33, v32, v33
    v_cmp_eq_u32 vcc, v31, v29
    v_cndmask_b32 v33, 0, v33, vcc
    v_cmp_gt_u32 vcc, 8, v28
    v_cndmask_b32 v{V_BSEL}, 0, v33, vcc
    v_cndmask_b32 v{V_BSEL+1}, v33, 0, vcc""")
    A(f"""v_and_b32 v32, 1, v28
    v_lshlrev_b32 v32, 4, v32
    v_mov_b32 v33, 0x3f80
    v_lshlrev_b32 v33, v32, v33
    v_lshrrev_b32 v31, 1, v28""")
    for j in range(4):
        A(f"""v_cmp_eq_u32 vcc, {j}, v31
        v_cndmask_b32 v{V_RSEL+j}, 0, v33, vcc""")
    for j in range(4):
        A(f"v_mov_b32 v{V_ONES+j}, 0x3f803f80")
    A(f"v_mov_b32 v{V_SENT}, -1")
    A(f"v_lshlrev_b32 v{V_L16}, 4, v0")
    A(f"""s_lshl_b32 s{S_T0}, s{S_WV}, 16
    s_lshl_b32 s{S_T1}, s{S_H}, 8
    s_add_u32 s{S_T0}, s{S_T0}, s{S_T1}
    s_add_u32 s{S_T0}, s{S_T0}, {WS_P}
    v_lshlrev_b32 v30, 13, v29
    v_lshlrev_b32 v31, 4, v28
    v_add3_u32 v{V_PST}, v30, v31, s{S_T0}""")
    A(f"""s_lshl_b32 s{S_T0}, s{S_H}, 13
    s_add_u32 s{S_T0}, s{S_T0}, {WS_P}
    v_add_u32 v{V_PLD}, s{S_T0}, v{V_L16}""")
    A(f"""s_lshr_b32 s{S_T0}, s{S_H}, 2
    s_lshl_b32 s{S_T0}, s{S_T0}, 7
    s_and_b32 s{S_T1}, s{S_H}, 3
    s_lshl_b32 s{S_T1}, s{S_T1}, 11
    s_add_u32 s{S_T0}, s{S_T0}, s{S_T1}
    s_add_u32 s{S_T0}, s{S_T0}, {WS_MEM}
    v_and_b32 v30, 1, v28
    v_lshlrev_b32 v30, 10, v30
    v_lshrrev_b32 v31, 1, v28
    v_lshlrev_b32 v31, 5, v31
    v_lshlrev_b32 v32, 3, v29
    v_add3_u32 v30, v30, v31, v32
    v_add_u32 v30, s{S_T0}, v30
    v_mov_b32 v31, 0x7ffff000
    v_cmp_gt_u32 vcc, 8, v28
    v_cndmask_b32 v{V_PUB}, v31, v30, vcc""")
    A(f"""v_lshrrev_b32 v30, 2, v28
    v_lshlrev_b32 v30, 1, v30
    v_and_b32 v31, 1, v28
    v_add_u32 v30, v30, v31
    v_lshlrev_b32 v30, 10, v30
    v_bfe_u32 v31, v28, 1, 1
    v_lshlrev_b32 v31, 4, v31
    v_lshlrev_b32 v32, 5, v29
    v_add3_u32 v30, v30, v31, v32
    s_lshl_b32 s{S_T0}, s{S_WV}, 8
    s_add_u32 s{S_T0}, s{S_T0}, {WS_MEM}
    v_add_u32 v{V_GAT}, s{S_T0}, v30""")
    A(f"""s_lshl_b32 s{S_T0}, s{S_WV}, 11
    s_add_u32 s{S_T0}, s{S_T0}, {L_MEM}
    v_add_u32 v{V_MW}, s{S_T0}, v{V_L16}""")
    A(f"""s_mul_i32 s{S_T0}, s{S_WV}, {SP_W}
    s_add_u32 s{S_T0}, s{S_T0}, {L_SP}
    v_mul_u32_u24 v30, {SP_PITCH}, v28
    v_lshlrev_b32 v31, 4, v29
    v_add3_u32 v30, v30, v31, s{S_T0}
    v_add_u32 v31, {L_DUMP}, v{V_L16}
    v_cmp_gt_u32 vcc, 8, v28
    v_cndmask_b32 v{V_SPX}, v31, v30, vcc""")
    A(f"""v_add_u32 v30, 96, v30
    v_cmp_lt_u32 s[56:57], 1, v29
    s_and_b64 vcc, vcc, s[56:57]
    v_cndmask_b32 v{V_SPM}, v31, v30, vcc""")
    A(f"""v_and_b32 v30, 7, v28
    v_mul_u32_u24 v30, {SP_PITCH}, v30
    v_lshrrev_b32 v31, 3, v28
    v_lshlrev_b32 v32, 6, v31
    v_lshlrev_b32 v33, 4, v29
    v_add3_u32 v32, v30, v32, v33
    v_add_u32 v{V_SPR}, {L_SP}, v32
    v_lshlrev_b32 v33, 1, v29
    v_add_u32 v33, v33, v31
    v_lshlrev_b32 v33, 2, v33
    v_add_u32 v33, v33, v30
    v_add_u32 v{V_SPR2}, {L_SP+128}, v33""")
    A(f"""s_lshr_b32 s{S_T0}, s{S_WV}, 1
    s_lshl_b32 s{S_T0}, s{S_T0}, 10
    s_and_b32 s{S_T1}, s{S_WV}, 1
    s_lshl_b32 s{S_T1}, s{S_T1}, 9
    s_add_u32 s{S_T0}, s{S_T0}, s{S_T1}
    s_add_u32 s{S_T0}, s{S_T0}, {L_OX}
    v_lshrrev_b32 v30, 1, v29
    v_lshlrev_b32 v30, 8, v30
    v_lshrrev_b32 v31, 1, v28
    v_lshlrev_b32 v31, 2, v31
    v_and_b32 v32, 1, v29
    v_lshlrev_b32 v32, 1, v32
    v_and_b32 v33, 1, v28
    v_add3_u32 v31, v31, v32, v33
    v_lshlrev_b32 v31, 4, v31
    v_add3_u32 v30, v30, v31, s{S_T0}
    v_add_u32 v31, {L_DUMP}, v{V_L16}
    v_cmp_gt_u32 vcc, 8, v28
    v_cndmask_b32 v{V_OXW}, v31, v30, vcc""")
    A(f"""s_lshl_b32 s{S_T0}, s{S_H}, 14
    s_lshl_b32 s{S_T1}, s{S_WV}, 12
    s_add_u32 s{S_T0}, s{S_T0}, s{S_T1}
    s_add_u32 s{S_T0}, s{S_T0}, {WS_KV}
    v_add_u32 v{V_KV}, s{S_T0}, v{V_L16}""")
    A(f"""s_lshl_b32 s{S_T0}, s{S_WV}, 15
    v_add_u32 v{V_WV}, s{S_T0}, v{V_L16}""")
    A(f"""s_lshl_b32 s{S_T0}, s{S_H}, 11
    s_lshl_b32 s{S_T1}, s{S_WV}, 9
    s_add_u32 s{S_T0}, s{S_T0}, s{S_T1}
    s_add_u32 s{S_T2}, s{S_T0}, {WS_KM}
    v_and_b32 v30, 7, v28
    v_lshlrev_b32 v30, 6, v30
    v_lshlrev_b32 v31, 4, v29
    v_add3_u32 v30, v30, v31, s{S_T2}
    v_mov_b32 v31, 0x7ffff000
    v_cmp_lt_u32 vcc, 7, v28
    v_cndmask_b32 v{V_KMA}, v31, v30, vcc
    s_add_u32 s{S_T2}, s{S_T0}, {WS_VM}
    v_lshlrev_b32 v30, 2, v0
    v_add_u32 v{V_VMA}, s{S_T2}, v30""")

def gen_weights(A):
    A.comment("weights load")
    VD=28
    A(f"""v_and_b32 v40, 15, v0
    v_lshrrev_b32 v41, 4, v0
    v_and_b32 v42, 1, v41
    v_lshlrev_b32 v42, 1, v42
    v_xor_b32 v42, v40, v42
    v_lshlrev_b32 v43, 13, v41
    s_lshl_b32 s{S_T0}, s{S_H}, 8
    v_add_u32 v43, s{S_T0}, v43""")
    for k in range(4):
        x = (4*(k&1)) ^ (8*((k>>1)&1))
        A(f"""v_xor_b32 v44, {x}, v42
        v_lshlrev_b32 v44, 4, v44
        v_add_u32 v{VD+k}, v43, v44""")
    A(f"""v_lshlrev_b32 v43, 10, v41
    s_lshl_b32 s{S_T0}, s{S_H}, 17
    s_lshl_b32 s{S_T1}, s{S_WV}, 8
    s_add_u32 s{S_T0}, s{S_T0}, s{S_T1}
    v_add_u32 v43, s{S_T0}, v43""")
    for k in range(4):
        x = (4*(k&1)) ^ (8*((k>>1)&1))
        A(f"""v_xor_b32 v44, {x}, v42
        v_lshlrev_b32 v44, 4, v44
        v_add_u32 v{VD+4+k}, v43, v44""")
    A(f"""v_bfe_u32 v44, v0, 2, 2
    v_and_b32 v45, 3, v0
    v_and_b32 v46, 1, v44
    v_lshrrev_b32 v47, 1, v44
    v_lshrrev_b32 v48, 1, v41
    v_and_b32 v49, 1, v41
    v_lshlrev_b32 v50, 4, v48
    v_lshlrev_b32 v51, 2, v49
    v_add_u32 v50, v50, v51
    v_lshlrev_b32 v51, 3, v47
    v_add3_u32 v50, v50, v51, v46
    v_lshlrev_b32 v50, 8, v50
    v_lshlrev_b32 v51, 1, v49
    v_lshlrev_b32 v52, 2, v47
    v_or3_b32 v51, v46, v51, v52
    v_lshlrev_b32 v51, 1, v51
    s_lshl_b32 s{S_T0}, s{S_WV}, 2
    v_lshrrev_b32 v52, 1, v45
    v_add_u32 v52, s{S_T0}, v52
    v_and_b32 v53, 1, v45
    v_lshlrev_b32 v53, 3, v53
    v_add_u32 v50, v50, v53""")
    A(f"""v_xor_b32 v54, v52, v51
    v_lshlrev_b32 v54, 4, v54
    v_add_u32 v36, v50, v54
    v_add_u32 v52, 2, v52
    v_xor_b32 v54, v52, v51
    v_lshlrev_b32 v54, 4, v54
    v_add_u32 v37, v50, v54""")
    A(f"""v_lshlrev_b32 v50, 3, v48
    v_lshlrev_b32 v51, 4, v49
    v_add_u32 v50, v50, v51
    v_lshlrev_b32 v51, 2, v47
    v_add3_u32 v50, v50, v51, v46
    v_lshlrev_b32 v50, 8, v50
    v_add_u32 v50, v50, v53
    s_lshl_b32 s{S_T0}, s{S_WV}, 14
    v_add_u32 v50, s{S_T0}, v50
    v_lshlrev_b32 v51, 1, v47
    v_lshlrev_b32 v52, 2, v49
    v_or3_b32 v51, v46, v51, v52
    v_lshlrev_b32 v51, 1, v51
    v_lshrrev_b32 v52, 1, v45""")
    for u in range(8):
        A(f"""v_add_u32 v54, {2*u}, v52
        v_xor_b32 v54, v54, v51
        v_lshlrev_b32 v54, 4, v54
        v_add_u32 v{56+u}, v50, v54""")

    def srd(ka):
        A(f"""s_load_dwordx2 s[{S_W}:{S_W+1}], s[0:1], {ka}
        s_waitcnt lgkmcnt(0)
        s_mov_b32 s{S_W+2}, 0x400000
        s_mov_b32 s{S_W+3}, 0x20000""")
    def issue(kind, half, region):
        for i in range(16):
            if kind == 'qkv':
                A(f"""s_lshl_b32 s{S_T0}, s{S_WV}, 19
                s_add_u32 s{S_T0}, s{S_T0}, {(256*half + 4*i)*8192}
                s_lshl_b32 s{S_T1}, s{S_WV}, 14
                s_add_u32 m0, s{S_T1}, {region + 4*i*256}
                s_nop 0
                buffer_load_dwordx4 v{VD+(i&3)}, s[{S_W}:{S_W+3}], s{S_T0} offen lds""")
            else:
                k = (i&1) | (((i>>2)&1)<<1)
                A(f"""s_mov_b32 s{S_T0}, {(64*half + 4*i)*1024}
                s_lshl_b32 s{S_T1}, s{S_WV}, 14
                s_add_u32 m0, s{S_T1}, {region + 4*i*256}
                s_nop 0
                buffer_load_dwordx4 v{VD+4+k}, s[{S_W}:{S_W+3}], s{S_T0} offen lds""")
    def read_qkv(half, region, dst):
        for T in range(2):
            for tl in range(4):
                t = 4*half + tl
                for j in range(4):
                    off = region + (64*tl + 32*(j>>1) + 2*(j&1))*256
                    base = 36+T
                    if off >= 65536:
                        base = 38+T; off -= 65536
                    A(f"ds_read_b64_tr_b16 {dst(T,t,j)}, v{base} offset:{off}")
                A("s_waitcnt lgkmcnt(0)") if False else None
    def read_o(t, region):
        for u in range(8):
            for j in range(4):
                off = region + (32*(j>>1) + 2*(j&1))*256
                r = V_WO + (u*2 + t)*8 + 2*j
                if region:
                    A(f"ds_read_b64_tr_b16 {v(r,2)}, v{64+u} offset:{off-65536}")
                else:
                    A(f"ds_read_b64_tr_b16 {v(r,2)}, v{56+u} offset:{off}")
    A(f"""v_add_u32 v38, 0x10000, v36
    v_add_u32 v39, 0x10000, v37""")
    for u in range(8):
        A(f"v_add_u32 v{64+u}, 0x10000, v{56+u}")
    RA, RB = 0, 65536
    dq = lambda T,t,j: a(A_WQ + (T*8+t)*8 + 2*j, 2)
    dk = lambda T,t,j: a(A_WK + (T*8+t)*8 + 2*j, 2)
    def W(n): A(f"s_waitcnt vmcnt({n})")
    def BAR(): A("s_waitcnt lgkmcnt(0)\ns_barrier")
    srd(KA['Wq']); issue('qkv',0,RA); issue('qkv',1,RB)
    W(16); A("s_barrier"); read_qkv(0,RA,dq); BAR()
    srd(KA['Wk']); issue('qkv',0,RA)
    W(16); A("s_barrier"); read_qkv(1,RB,dq); BAR()
    issue('qkv',1,RB)
    W(16); A("s_barrier"); read_qkv(0,RA,dk); BAR()
    srd(KA['Wo']); issue('o',0,RA)
    W(16); A("s_barrier"); read_qkv(1,RB,dk); BAR()
    issue('o',1,RB)
    W(16); A("s_barrier"); read_o(0,RA); BAR()
    srd(KA['Wv']); issue('qkv',0,RA)
    W(16); A("s_barrier"); read_o(1,RB); BAR()
    issue('qkv',1,RB)
    TV=64
    dv = lambda T,t,j: v(TV + (T*4+(t&3))*8 + 2*j, 2)
    for half, reg in ((0,RA),(1,RB)):
        W(16 if half==0 else 0); A("s_barrier"); read_qkv(half,reg,dv); BAR()
        A(f"""s_lshl_b32 s{S_T0}, s{S_WV}, 14
        s_add_u32 s{S_T0}, s{S_T0}, {reg}
        v_add_u32 v40, s{S_T0}, v{V_L16}""")
        for f in range(8):
            for q in range(2):
                A(f"ds_write_b128 v40, {v(TV+f*8+q*4,4)} offset:{f*2048+q*1024}")
        BAR()
    A(f"""s_lshl_b32 s{S_T0}, s{S_WV}, 14
    v_add_u32 v{V_WV}, s{S_T0}, v{V_L16}""")

def wv_off(T, t, q):
    return (t>>2)*65536 + (T*4+(t&3))*2048 + q*1024

def gen_step(A, fast, diag=False, hist=False, lab=""):
    stm = "" if fast else "sc1"
    SRD = f"s[{S_WS}:{S_WS+3}]"
    G=V_WB
    A(f"L_gat{lab}:")
    A(f"""buffer_load_dwordx4 {v(G,4)}, v{V_GAT}, {SRD}, s{S_GSLOT} offen sc1
    buffer_load_dwordx4 {v(G+4,4)}, v{V_GAT}, {SRD}, s{S_GSLOT} offen offset:128 sc1
    s_waitcnt vmcnt(0)
    v_max3_u32 v{V_T}, v{G}, v{G+1}, v{G+2}
    v_max3_u32 v{V_T+1}, v{G+3}, v{G+4}, v{G+5}
    v_max3_u32 v{V_T}, v{V_T}, v{G+6}, v{G+7}
    v_max_u32 v{V_T}, v{V_T}, v{V_T+1}
    v_cmp_eq_u32 vcc, -1, v{V_T}""")
    A.auto=False; A(f"s_cbranch_vccnz L_gat{lab}"); A.auto=True
    stamp(A,0,diag)
    A(f"""ds_write_b128 v{V_MW}, {v(G,4)}
    ds_write_b128 v{V_MW}, {v(G+4,4)} offset:1024""")
    for f in range(4):
        dst = V_KX + 4*f
        A(f"buffer_load_dwordx4 {v(dst,4)}, v{V_KV}, {SRD}, s{S_KVOFF} offen offset:{1024*f} sc1")
    for r in range(24): A(f"v_mov_b32 v{V_AQ+r}, 0")
    A("s_waitcnt lgkmcnt(0)\ns_barrier")
    for t in range(8):
        A(f"ds_read_b128 {v(V_MA+4*t,4)}, v{V_L16} offset:{L_MEM + 1024*t}") if L_MEM + 1024*t < 65536 else None
    A(f"v_add_u32 v{V_T+3}, {L_MEM}, v{V_L16}")
    for t in range(8):
        A(f"ds_read_b128 {v(V_MA+4*t,4)}, v{V_T+3} offset:{1024*t}")
    stamp(A,1,diag)
    for t in range(8):
        A(f"s_waitcnt lgkmcnt({7-t})")
        for T in range(2):
            A(f"v_smfmac_f32_16x16x64_bf16 {v(V_AQ+4*T,4)}, {v(V_MA+4*t,4)}, {a(A_WQ+(T*8+t)*8,8)}, v{V_IDX}")
        for T in range(2):
            A(f"v_smfmac_f32_16x16x64_bf16 {v(V_AK+4*T,4)}, {v(V_MA+4*t,4)}, {a(A_WK+(T*8+t)*8,8)}, v{V_IDX}")
    stamp(A,2,diag)
    seq = [(T,t) for t in range(8) for T in range(2)]
    A(f"v_add_u32 v{V_T+2}, 0x10000, v{V_WV}")
    def rd(k):
        T,t = seq[k]; b = V_WB + (k%3)*8
        base = V_WV if t<4 else V_T+2
        for q in range(2):
            A(f"ds_read_b128 {v(b+4*q,4)}, v{base} offset:{wv_off(T,t,q)&65535}")
    rd(0); rd(1); rd(2)
    for k in range(16):
        T,t = seq[k]; b = V_WB + (k%3)*8
        outstanding = min(16,k+3) - k - 1
        A(f"s_waitcnt lgkmcnt({2*outstanding})")
        A(f"v_smfmac_f32_16x16x64_bf16 {v(V_AV+4*T,4)}, {v(V_MA+4*t,4)}, {v(b,8)}, v{V_IDX}")
        if k+3 < 16:
            A("s_nop 1")
            rd(k+3)
    stamp(A,3,diag)
    QK=V_T
    for (src,dst) in ((V_AQ,QK),(V_AK,QK+1),(V_AQ+4,QK+2),(V_AK+4,QK+3)):
        A(f"v_pk_add_f32 {v(src,2)}, {v(src,2)}, {v(src+2,2)}")
    for (src,dst) in ((V_AQ,QK),(V_AK,QK+1),(V_AQ+4,QK+2),(V_AK+4,QK+3)):
        A(f"v_cvt_pk_bf16_f32 v{dst}, v{src}, v{src+1}")
    VMP=V_WB
    A(f"""v_pk_add_f32 {v(V_AV,2)}, {v(V_AV,2)}, {v(V_AV+2,2)}
    v_pk_add_f32 {v(V_AV+4,2)}, {v(V_AV+4,2)}, {v(V_AV+6,2)}
    v_cvt_pk_bf16_f32 v{VMP}, v{V_AV}, v{V_AV+1}
    v_mov_b32 v{VMP+1}, 0
    v_cvt_pk_bf16_f32 v{VMP+2}, v{V_AV+4}, v{V_AV+5}
    v_mov_b32 v{VMP+3}, 0""")
    D0=V_AQ; D1=V_AQ+4
    A(f"""v_mfma_f32_16x16x16_bf16 {v(D0,4)}, {v(QK,2)}, {v(V_BSEL,2)}, 0
    v_mfma_f32_16x16x16_bf16 {v(D1,4)}, {v(QK+2,2)}, {v(V_BSEL,2)}, 0""")
    QF=V_AK
    A(f"""v_cvt_pk_bf16_f32 v{QF}, v{D0}, v{D0+1}
    v_cvt_pk_bf16_f32 v{QF+1}, v{D0+2}, v{D0+3}
    v_cvt_pk_bf16_f32 v{QF+2}, v{D1}, v{D1+1}
    v_cvt_pk_bf16_f32 v{QF+3}, v{D1+2}, v{D1+3}""")
    stamp(A,12,diag)
    A(f"""buffer_store_dwordx4 {v(QF,4)}, v{V_KMA}, {SRD}, s{S_KMOFF} offen sc1
    buffer_store_dword v{VMP}, v{V_VMA}, {SRD}, s{S_KMOFF} offen sc1
    buffer_store_dword v{VMP+2}, v{V_VMA}, {SRD}, s{S_KMOFF} offen offset:256 sc1""")
    A("s_waitcnt vmcnt(3)")
    SX=V_MA
    A(f"""v_mfma_f32_16x16x32_bf16 {v(SX,4)}, {v(V_KX,4)}, {v(QF,4)}, 0
    v_mfma_f32_16x16x32_bf16 {v(SX+4,4)}, {v(V_KX+4,4)}, {v(QF,4)}, 0
    v_mfma_f32_16x16x32_bf16 {v(SX+8,4)}, {v(QF,4)}, {v(QF,4)}, 0""")
    stamp(A,13,diag)
    A(f"""ds_write_b128 v{V_SPX}, {v(SX,4)}
    ds_write_b128 v{V_SPX}, {v(SX+4,4)} offset:64
    ds_write_b128 v{V_SPM}, {v(SX+8,4)}
    s_waitcnt lgkmcnt(0)
    s_barrier""")
    stamp(A,4,diag)
    R=V_MA+12
    for w2 in range(4):
        A(f"ds_read_b128 {v(R+4*w2,4)}, v{V_SPR} offset:{w2*SP_W}")
    for w2 in range(4):
        A(f"ds_read_b32 v{R+16+w2}, v{V_SPR2} offset:{w2*SP_W}")
    A("s_waitcnt lgkmcnt(0)")
    stamp(A,8,diag)
    A(f"""v_pk_add_f32 {v(R,2)}, {v(R,2)}, {v(R+4,2)}
    v_pk_add_f32 {v(R+2,2)}, {v(R+2,2)}, {v(R+6,2)}
    v_pk_add_f32 {v(R+8,2)}, {v(R+8,2)}, {v(R+12,2)}
    v_pk_add_f32 {v(R+10,2)}, {v(R+10,2)}, {v(R+14,2)}
    v_add_f32 v{R+16}, v{R+16}, v{R+17}
    v_add_f32 v{R+18}, v{R+18}, v{R+19}
    v_pk_add_f32 {v(R,2)}, {v(R,2)}, {v(R+8,2)}
    v_pk_add_f32 {v(R+2,2)}, {v(R+2,2)}, {v(R+10,2)}
    v_add_f32 v{R+4}, v{R+16}, v{R+18}""")
    MX=R+5; TM=R+6
    A(f"""v_max3_f32 v{MX}, v{R}, v{R+1}, v{R+2}
    v_max3_f32 v{MX}, v{MX}, v{R+3}, v{R+4}
    v_max_f32_dpp v{MX}, v{MX}, v{MX} row_ror:8 row_mask:0xf bank_mask:0xf
    v_mov_b32 v{TM}, v{MX}
    v_permlane16_swap_b32 v{MX}, v{TM}
    v_max_f32 v{MX}, v{MX}, v{TM}
    v_mov_b32 v{TM}, v{MX}
    v_permlane32_swap_b32 v{MX}, v{TM}
    v_max_f32 v{MX}, v{MX}, v{TM}
    v_mul_f32 v{MX}, s{S_SC}, v{MX}""")
    stamp(A,9,diag)
    for j in range(5):
        A(f"v_fma_f32 v{R+j}, v{R+j}, s{S_SC}, -v{MX}")
    for j in range(5):
        A(f"v_exp_f32 v{R+j}, v{R+j}")
    PB=R+8
    PM=R+12
    A(f"""v_cvt_pk_bf16_f32 v{PB}, v{R}, v{R+1}
    v_cvt_pk_bf16_f32 v{PB+1}, v{R+2}, v{R+3}
    v_mov_b32_dpp v{R+5}, v{R+4} row_ror:8 row_mask:0xf bank_mask:0xf
    v_mov_b32_dpp v{PB+2}, v{PB} row_ror:8 row_mask:0xf bank_mask:0xf
    v_mov_b32_dpp v{PB+3}, v{PB+1} row_ror:8 row_mask:0xf bank_mask:0xf
    v_cvt_pk_bf16_f32 v{PM}, v{R+4}, v{R+5}
    v_mov_b32 v{PM+1}, 0""")
    stamp(A,10,diag)
    SUM=V_AQ; O0=V_AQ+4; O1=V_AK+4
    A(f"""v_mfma_f32_16x16x32_bf16 {v(SUM,4)}, {v(V_ONES,4)}, {v(PB,4)}, 0
    v_mfma_f32_16x16x32_bf16 {v(O0,4)}, {v(V_VX,4)}, {v(PB,4)}, 0
    v_mfma_f32_16x16x32_bf16 {v(O1,4)}, {v(V_VX+4,4)}, {v(PB,4)}, 0
    v_mfma_f32_16x16x16_bf16 {v(SUM,4)}, {v(V_ONES,2)}, {v(PM,2)}, {v(SUM,4)}
    v_mfma_f32_16x16x16_bf16 {v(O0,4)}, {v(VMP,2)}, {v(PM,2)}, {v(O0,4)}
    v_mfma_f32_16x16x16_bf16 {v(O1,4)}, {v(VMP+2,2)}, {v(PM,2)}, {v(O1,4)}""")
    RC=R
    A(f"""v_rcp_f32 v{RC}, v{SUM}
    v_mul_f32 v{O0}, v{O0}, v{RC}
    v_mul_f32 v{O0+1}, v{O0+1}, v{RC}
    v_mul_f32 v{O0+2}, v{O0+2}, v{RC}
    v_mul_f32 v{O0+3}, v{O0+3}, v{RC}
    v_mul_f32 v{O1}, v{O1}, v{RC}
    v_mul_f32 v{O1+1}, v{O1+1}, v{RC}
    v_mul_f32 v{O1+2}, v{O1+2}, v{RC}
    v_mul_f32 v{O1+3}, v{O1+3}, v{RC}""")
    OG=R+4
    A(f"""v_cvt_pk_bf16_f32 v{OG}, v{O0}, v{O0+1}
    v_cvt_pk_bf16_f32 v{OG+1}, v{O0+2}, v{O0+3}
    v_cvt_pk_bf16_f32 v{OG+2}, v{O1}, v{O1+1}
    v_cvt_pk_bf16_f32 v{OG+3}, v{O1+2}, v{O1+3}""")
    stamp(A,11,diag)
    A(f"""ds_write_b128 v{V_OXW}, {v(OG,4)}
    s_waitcnt lgkmcnt(0)
    s_barrier""")
    OA=V_MA
    A(f"v_add_u32 v{V_T+3}, {L_OX}, v{V_L16}")
    A(f"""ds_read_b128 {v(OA,4)}, v{V_T+3}
    ds_read_b128 {v(OA+4,4)}, v{V_T+3} offset:1024""")
    stamp(A,5,diag)
    AC=V_MA+8
    for r in range(32): A(f"v_mov_b32 v{AC+r}, 0")
    A("s_waitcnt lgkmcnt(0)")
    PK=V_WB
    for p in range(2):
        for u in range(4*p,4*p+4):
            for t in range(2):
                A(f"v_smfmac_f32_16x16x64_bf16 {v(AC+4*u,4)}, {v(OA+4*t,4)}, {v(V_WO+(u*2+t)*8,8)}, v{V_IDX}")
    for p in range(2):
        for u in range(4*p,4*p+4):
            A(f"v_pk_add_f32 {v(AC+4*u,2)}, {v(AC+4*u,2)}, {v(AC+4*u+2,2)}")
        for u in range(4*p,4*p+4):
            A(f"v_cvt_pk_bf16_f32 v{PK+4*p+(u&3)}, v{AC+4*u}, v{AC+4*u+1}")
        A(f"v_and_or_b32 v{PK+4*p}, v{PK+4*p}, -2, s{S_TAG}")
        if p==0:
            A(f"buffer_store_dwordx4 {v(PK,4)}, v{V_PST}, {SRD}, 0 offen {stm}")
        else:
            A(f"s_mov_b32 s{S_T0}, 0x8000")
            A(f"buffer_store_dwordx4 {v(PK+4,4)}, v{V_PST}, {SRD}, s{S_T0} offen {stm}")
    stamp(A,6,diag)
    A(f"""s_cmp_lg_u32 s{S_WV}, 0
    s_cbranch_scc1 L_nored{lab}""")
    RD=V_MA
    A(f"L_red{lab}:")
    for i in range(8):
        A(f"buffer_load_dwordx4 {v(RD+4*i,4)}, v{V_PLD}, {SRD}, 0 offen offset:{1024*(i&3)} sc1") if i<4 else None
    A(f"s_mov_b32 s{S_T0}, 4096")
    for i in range(4,8):
        A(f"buffer_load_dwordx4 {v(RD+4*i,4)}, v{V_PLD}, {SRD}, s{S_T0} offen offset:{1024*(i&3)} sc1")
    A("s_waitcnt vmcnt(0)")
    A(f"""v_bitop3_b32 v{V_T}, v{RD}, v{RD+4}, s{S_TAGM} bitop3:0x7e
    v_bitop3_b32 v{V_T+1}, v{RD+8}, v{RD+12}, s{S_TAGM} bitop3:0x7e
    v_bitop3_b32 v{V_T+2}, v{RD+16}, v{RD+20}, s{S_TAGM} bitop3:0x7e
    v_bitop3_b32 v{V_T+3}, v{RD+24}, v{RD+28}, s{S_TAGM} bitop3:0x7e
    v_or3_b32 v{V_T}, v{V_T}, v{V_T+1}, v{V_T+2}
    v_or_b32 v{V_T}, v{V_T}, v{V_T+3}
    v_and_b32 v{V_T}, 1, v{V_T}
    v_cmp_ne_u32 vcc, 0, v{V_T}""")
    A.auto=False; A(f"s_cbranch_vccnz L_red{lab}"); A.auto=True
    RA_=V_AQ
    for i in range(8):
        c = "0" if i==0 else v(RA_,4)
        A(f"v_mfma_f32_16x16x32_bf16 {v(RA_,4)}, {v(RD+4*i,4)}, {v(V_RSEL,4)}, {c}")
    A(f"""v_cvt_pk_bf16_f32 v{V_T}, v{RA_}, v{RA_+1}
    v_cvt_pk_bf16_f32 v{V_T+1}, v{RA_+2}, v{RA_+3}
    v_min_u32 v{V_T}, -2, v{V_T}
    v_min_u32 v{V_T+1}, -2, v{V_T+1}
    buffer_store_dwordx2 {v(V_T,2)}, v{V_PUB}, {SRD}, s{S_PSLOT} offen {stm}""")
    A(f"""v_mov_b32 v{V_T+2}, -1
    v_mov_b32 v{V_T+3}, -1
    buffer_store_dwordx2 {v(V_T+2,2)}, v{V_PUB}, {SRD}, s{S_CSLOT} offen {stm}""")
    if hist:
        A(f"buffer_store_dwordx2 {v(V_T,2)}, v{V_PUB}, {SRD}, s{S_HIST} offen")
    A(f"L_nored{lab}:")
    stamp(A,7,diag)

def gen_rec_main(A, fast=True, diag=False, hist=False, nsteps=64, lab=""):
    SRD = f"s[{S_WS}:{S_WS+3}]"
    gen_prologue_addrs(A)
    A(f"""v_mov_b32 v28, 0
    v_mov_b32 v29, 0
    v_mov_b32 v30, 0
    v_mov_b32 v31, 0
    s_lshl_b32 s{S_T0}, s{S_WV}, 11
    buffer_store_dwordx4 v[28:31], v{V_PLD}, {SRD}, s{S_T0} offen sc1
    buffer_store_dwordx4 v[28:31], v{V_PLD}, {SRD}, s{S_T0} offen offset:1024 sc1
    s_cmp_lg_u32 s{S_WV}, 0
    s_cbranch_scc1 L_noinit{lab}
    s_load_dwordx2 s[{S_W}:{S_W+1}], s[0:1], {KA['B_mem0']}
    s_mov_b32 s{S_W+2}, 8192
    s_mov_b32 s{S_W+3}, 0x20000
    v_subrev_u32 v32, {WS_MEM}, v{V_PUB}
    s_waitcnt lgkmcnt(0)
    buffer_load_dwordx2 v[34:35], v32, s[{S_W}:{S_W+3}], 0 offen
    v_mov_b32 v36, -1
    v_mov_b32 v37, -1
    s_mov_b32 s{S_T0}, 8192
    s_mov_b32 s{S_T1}, 16384
    buffer_store_dwordx2 v[36:37], v{V_PUB}, {SRD}, s{S_T0} offen sc1
    buffer_store_dwordx2 v[36:37], v{V_PUB}, {SRD}, s{S_T1} offen sc1
    s_waitcnt vmcnt(2)
    v_min_u32 v34, -2, v34
    v_min_u32 v35, -2, v35
    buffer_store_dwordx2 v[34:35], v{V_PUB}, {SRD}, 0 offen sc1
    L_noinit{lab}:
    s_waitcnt vmcnt(0)
    s_barrier
    s_cmp_lg_u32 s{S_WV}, 0
    s_cbranch_scc1 L_noarr{lab}
    v_mov_b32 v28, 4
    v_mov_b32 v29, 1
    s_mov_b64 exec, 1
    global_atomic_add v28, v29, s[6:7]
    s_mov_b64 exec, -1
    L_noarr{lab}:""")
    gen_weights(A)
    A(f"""v_mov_b32 v28, 4
    L_wait32{lab}:
    global_load_dword v29, v28, s[6:7] sc1
    s_waitcnt vmcnt(0)
    v_cmp_gt_u32 vcc, 32, v29
    s_cbranch_vccnz L_wait32{lab}""")
    A(f"""s_mov_b32 s{S_STEP}, 0
    s_mov_b32 s{S_GSLOT}, 0
    s_mov_b32 s{S_PSLOT}, 8192
    s_mov_b32 s{S_CSLOT}, 0
    s_mov_b32 s{S_TAG}, 1
    s_mov_b32 s{S_TAGM}, -1
    s_mov_b32 s{S_KVOFF}, 0
    s_mov_b32 s{S_KMOFF}, 0
    s_mov_b32 s{S_SC}, 0x3e0293ee
    s_mov_b32 s{S_HIST}, {WS_HIST - WS_MEM + 8192}""")
    if diag:
        for i in range(16): A(f"s_mov_b32 s{S_ST+i}, 0")
        A("s_memtime s[60:61]\ns_waitcnt lgkmcnt(0)\ns_mov_b32 s63, s60\ns_mov_b32 s58, s60")
    A(f"L_step{lab}:")
    gen_step(A, fast, diag, hist, lab)
    A(f"""s_add_u32 s{S_STEP}, s{S_STEP}, 1
    s_mov_b32 s{S_GSLOT}, s{S_PSLOT}
    s_mov_b32 s{S_CSLOT}, s{S_PSLOT}
    s_add_u32 s{S_PSLOT}, s{S_PSLOT}, 8192
    s_cmp_ge_u32 s{S_PSLOT}, 24576
    s_cselect_b32 s{S_PSLOT}, 0, s{S_PSLOT}
    s_xor_b32 s{S_TAG}, s{S_TAG}, 1
    s_not_b32 s{S_TAGM}, s{S_TAGM}
    s_add_u32 s{S_KVOFF}, s{S_KVOFF}, 0x80000
    s_add_u32 s{S_KMOFF}, s{S_KMOFF}, 0x10000
    s_add_u32 s{S_HIST}, s{S_HIST}, 8192
    s_cmp_lt_u32 s{S_STEP}, {nsteps}
    s_cbranch_scc1 L_step{lab}""")
    if diag:
        A(f"""s_memtime s[60:61]
        s_waitcnt lgkmcnt(0)
        s_sub_u32 s{S_ST+15}, s60, s58
        s_lshl_b32 s{S_T0}, s{S_H}, 2
        s_add_u32 s{S_T0}, s{S_T0}, s{S_WV}
        s_lshl_b32 s{S_T0}, s{S_T0}, 6
        s_add_u32 s{S_T0}, s{S_T0}, {WS_STAMP}
        v_mov_b32 v28, s{S_T0}
        s_mov_b64 exec, 1""")
        for q in range(4):
            for r in range(4): A(f"v_mov_b32 v{32+r}, s{S_ST+4*q+r}")
            A(f"buffer_store_dwordx4 v[32:35], v28, {SRD}, 0 offen offset:{16*q}")
        A("s_mov_b64 exec, -1")
    A("s_waitcnt vmcnt(0)")

def gen_rec_standalone(name, fast=True, diag=False, hist=False, nsteps=64, xcd=0):
    A = Asm()
    A(f"""s_cmp_ge_u32 s2, 256
    s_cbranch_scc1 L_end
    s_getreg_b32 s3, hwreg(HW_REG_XCC_ID)
    s_and_b32 s3, s3, 15
    s_cmp_lg_u32 s3, {xcd}
    s_cbranch_scc1 L_end
    s_load_dwordx2 s[6:7], s[0:1], {KA['dbg']}
    s_load_dwordx2 s[8:9], s[0:1], {KA['ws']}
    v_lshrrev_b32 v1, 6, v0
    v_and_b32 v0, 63, v0
    v_readfirstlane_b32 s{S_WV}, v1
    s_mov_b32 s10, {WS_SIZE}
    s_mov_b32 s11, 0x20000
    s_waitcnt lgkmcnt(0)
    s_cmp_lg_u32 s{S_WV}, 0
    s_cbranch_scc1 L_norank
    v_mov_b32 v1, 0
    v_mov_b32 v2, 1
    s_mov_b64 exec, 1
    global_atomic_add v3, v1, v2, s[6:7] sc0
    s_waitcnt vmcnt(0)
    v_mov_b32 v1, {L_MISC}
    ds_write_b32 v1, v3
    s_mov_b64 exec, -1
    L_norank:
    s_waitcnt lgkmcnt(0)
    s_barrier
    v_mov_b32 v1, {L_MISC}
    ds_read_b32 v3, v1
    s_waitcnt lgkmcnt(0)
    v_readfirstlane_b32 s{S_H}, v3
    s_cmp_ge_u32 s{S_H}, 32
    s_cbranch_scc1 L_end
    s_barrier""")
    gen_rec_main(A, fast, diag, hist, nsteps)
    A("L_end:")
    return A
```

```python
from asmlib import *
from layout import *
import rec as R1
from rec import (S_WS,S_W,S_H,S_WV,S_STEP,S_GSLOT,S_PSLOT,S_CSLOT,S_TAG,S_TAGM,S_KVOFF,S_T0,S_T1,S_T2,S_T3,S_KMOFF,S_SC,S_HIST,S_ST,
                 A_WQ,A_WK,V_WO,L_WV,L_MEM,LDS_BYTES,wv_off)
S_PSTO=32
S_PST1=33
S_PLDO=34
S_PUBO=35
S_GATO=36
S_KVN=37
S_VMO=38
S_KMO=39

V_LANE=0; V_IDX=1; V_BSEL=2; V_RSEL=6; V_ONES=10
V_PST=14; V_PLD=15; V_PUB=16; V_GAT=17; V_L16=12+0
V_L16=18; V_MW=19; V_MR=20; V_SPX0=21; V_SPX1=22; V_SPM=23; V_SPR=24; V_SPR2=25; V_OXW=26; V_WV=27; V_WV2=28; V_KMA=29
V_MA=30; V_AQ=62; V_AK=70; V_AV=78; V_KX=86; V_VX=94; V_WB=102; V_T=126
L_SP=L_MEM+8192; L_SPM=L_SP+4096; L_OX=L_SP+4096+2048; L_DUMP=L_OX+2048; L_MISC=L_DUMP+2048

class Trk:
    def __init__(s, A): s.A=A; s.l=0; s.v=0
    def ds(s, text): s.A(text); s.l+=1; return s.l
    def vm(s, text): s.A(text); s.v+=1; return s.v
    def wl(s, idx): s.A(f"s_waitcnt lgkmcnt({min(15, s.l-idx)})")
    def wv(s, idx): s.A(f"s_waitcnt vmcnt({min(63, s.v-idx)})")

def gen_prologue_addrs(A):
    A.comment("lane constants")
    t=32
    A(f"""v_and_b32 v32, 15, v0
    v_lshrrev_b32 v33, 4, v0""")
    A(f"""v_bfe_u32 v34, v32, 1, 1
    v_mov_b32 v35, 0x4444
    v_mov_b32 v36, 0xeeee
    v_cmp_eq_u32 vcc, 1, v34
    v_cndmask_b32 v{V_IDX}, v35, v36, vcc""")
    A(f"""v_and_b32 v34, 7, v32
    v_lshrrev_b32 v35, 1, v34
    v_and_b32 v36, 1, v32
    v_lshlrev_b32 v36, 4, v36
    v_mov_b32 v37, 0x3f80
    v_lshlrev_b32 v37, v36, v37
    v_mov_b32 v38, v37
    v_cmp_eq_u32 vcc, v35, v33
    v_cndmask_b32 v37, 0, v37, vcc
    v_cmp_gt_u32 vcc, 8, v32
    v_cndmask_b32 v{V_BSEL}, 0, v37, vcc
    v_cndmask_b32 v{V_BSEL+1}, 0, v37, vcc
    v_cndmask_b32 v{V_BSEL+2}, v37, 0, vcc
    v_cndmask_b32 v{V_BSEL+3}, v37, 0, vcc
    v_lshrrev_b32 v35, 1, v32""")
    for j in range(4):
        A(f"""v_cmp_eq_u32 vcc, {j}, v35
        v_cndmask_b32 v{V_RSEL+j}, 0, v38, vcc""")
    for j in range(4): A(f"v_mov_b32 v{V_ONES+j}, 0x3f803f80")
    A(f"""v_lshlrev_b32 v{V_L16}, 4, v0
    v_add_u32 v{V_MR}, {L_MEM}, v{V_L16}""")
    A(f"""v_lshlrev_b32 v34, 13, v33
    v_lshrrev_b32 v35, 2, v32
    v_lshlrev_b32 v35, 11, v35
    v_and_b32 v36, 3, v32
    v_lshlrev_b32 v36, 4, v36
    v_add3_u32 v{V_PST}, v34, v35, v36
    s_lshl_b32 s{S_T0}, s{S_WV}, 16
    s_lshl_b32 s{S_T1}, s{S_H}, 6
    s_add_u32 s{S_T0}, s{S_T0}, s{S_T1}
    s_add_u32 s{S_PSTO}, s{S_T0}, {WS_P}
    s_add_u32 s{S_PST1}, s{S_PSTO}, 0x8000""")
    A(f"""s_lshl_b32 s{S_T0}, s{S_H}, 13
    s_lshl_b32 s{S_T1}, s{S_WV}, 11
    s_add_u32 s{S_T0}, s{S_T0}, s{S_T1}
    s_add_u32 s{S_PLDO}, s{S_T0}, {WS_P}""")
    A(f"""v_lshrrev_b32 v34, 2, v32
    v_lshlrev_b32 v34, 9, v34
    v_and_b32 v35, 1, v32
    v_lshlrev_b32 v35, 4, v35
    v_and_b32 v36, 1, v33
    v_lshlrev_b32 v36, 1, v36
    v_lshrrev_b32 v37, 1, v33
    v_or_b32 v36, v36, v37
    v_lshlrev_b32 v36, 2, v36
    v_add3_u32 v34, v34, v35, v36
    v_mov_b32 v35, 0x7fff0000
    v_and_b32 v36, 10, v32
    v_cmp_eq_u32 vcc, 0, v36
    v_cndmask_b32 v{V_PUB}, v35, v34, vcc
    s_lshr_b32 s{S_T0}, s{S_H}, 2
    s_lshl_b32 s{S_T0}, s{S_T0}, 10
    s_and_b32 s{S_T1}, s{S_H}, 3
    s_lshl_b32 s{S_T1}, s{S_T1}, 6
    s_add_u32 s{S_T0}, s{S_T0}, s{S_T1}
    s_lshr_b32 s{S_T1}, s{S_WV}, 1
    s_lshl_b32 s{S_T1}, s{S_T1}, 8
    s_add_u32 s{S_T0}, s{S_T0}, s{S_T1}
    s_and_b32 s{S_T1}, s{S_WV}, 1
    s_lshl_b32 s{S_T1}, s{S_T1}, 5
    s_add_u32 s{S_T0}, s{S_T0}, s{S_T1}
    s_add_u32 s{S_PUBO}, s{S_T0}, {WS_MEM}""")
    A(f"""v_lshrrev_b32 v34, 2, v32
    v_lshlrev_b32 v34, 1, v34
    v_and_b32 v35, 1, v32
    v_add_u32 v40, v34, v35
    v_bfe_u32 v41, v32, 1, 1
    s_lshl_b32 s{S_T0}, s{S_WV}, 11
    s_add_u32 s{S_GATO}, s{S_T0}, {WS_MEM}""")
    A(f"""s_lshl_b32 s{S_T0}, s{S_WV}, 11
    v_add_u32 v{V_MW}, s{S_T0}, v{V_MR}""")
    def phi(src, dst, t):
        A(f"""v_and_b32 v{dst}, 1, v{src}
        v_bfe_u32 v{t}, v{src}, 2, 1
        v_lshlrev_b32 v{t+1}, 1, v{t}
        v_or_b32 v{dst}, v{dst}, v{t+1}
        v_bfe_u32 v{t+1}, v{src}, 1, 1
        v_xor_b32 v{t}, v{t}, v{t+1}
        v_lshlrev_b32 v{t}, 2, v{t}
        v_or_b32 v{dst}, v{dst}, v{t}""")
    A("v_and_b32 v42, 7, v32")
    phi(42, 43, 44)
    A(f"""s_lshl_b32 s{S_T0}, s{S_WV}, 10
    s_add_u32 s{S_T0}, s{S_T0}, {L_SP}
    v_lshlrev_b32 v44, 1, v33
    v_xor_b32 v44, v44, v43
    v_lshlrev_b32 v44, 4, v44
    v_lshlrev_b32 v45, 7, v42
    v_add3_u32 v44, v44, v45, s{S_T0}
    v_xor_b32 v45, 16, v44
    v_add_u32 v46, {L_DUMP}, v{V_L16}
    v_cmp_gt_u32 vcc, 8, v32
    v_cndmask_b32 v{V_SPX0}, v46, v44, vcc
    v_cndmask_b32 v{V_SPX1}, v46, v45, vcc
    s_lshl_b32 s{S_T0}, s{S_WV}, 2
    s_add_u32 s{S_T0}, s{S_T0}, {L_SPM - 128}
    v_mul_u32_u24 v44, 160, v42
    v_lshlrev_b32 v45, 6, v33
    v_add3_u32 v44, v44, v45, s{S_T0}
    v_cmp_lt_u32 s[56:57], 1, v33
    s_nop 1
    s_and_b64 vcc, vcc, s[56:57]
    v_cndmask_b32 v{V_SPM}, v46, v44, vcc""")
    phi(40, 43, 44)
    A(f"""v_lshlrev_b32 v44, 1, v33
    v_add_u32 v44, v44, v41
    v_xor_b32 v45, v44, v43
    v_lshlrev_b32 v45, 4, v45
    v_lshlrev_b32 v47, 7, v40
    v_add_u32 v45, v45, v47
    v_add_u32 v{V_SPR}, {L_SP}, v45
    v_lshlrev_b32 v44, 4, v44
    v_mul_u32_u24 v47, 160, v40
    v_add_u32 v44, v44, v47
    v_add_u32 v{V_SPR2}, {L_SPM}, v44""")
    A(f"""s_lshr_b32 s{S_T0}, s{S_WV}, 1
    s_lshl_b32 s{S_T0}, s{S_T0}, 10
    s_and_b32 s{S_T1}, s{S_WV}, 1
    s_lshl_b32 s{S_T1}, s{S_T1}, 9
    s_add_u32 s{S_T0}, s{S_T0}, s{S_T1}
    s_add_u32 s{S_T0}, s{S_T0}, {L_OX}
    v_lshrrev_b32 v34, 1, v33
    v_lshlrev_b32 v34, 8, v34
    v_and_b32 v35, 1, v33
    v_lshlrev_b32 v35, 1, v35
    v_or_b32 v35, v35, v32
    v_lshlrev_b32 v35, 4, v35
    v_add3_u32 v34, v34, v35, s{S_T0}
    v_cmp_eq_u32 vcc, 0, v41
    v_cndmask_b32 v{V_OXW}, v46, v34, vcc""")
    A(f"""v_and_b32 v34, 7, v32
    v_lshlrev_b32 v34, 6, v34
    v_lshlrev_b32 v35, 4, v33
    v_add_u32 v34, v34, v35
    v_mov_b32 v35, 0x7fff0000
    v_cmp_lt_u32 vcc, 7, v32
    v_cndmask_b32 v{V_KMA}, v35, v34, vcc""")

def feat_of_col(c):
    w=c>>7; p=(c>>6)&1; th=(c>>5)&1; n=(c>>1)&15; b=c&1
    return 128*w+64*p+16*(2*th+b)+n

def gen_weights(A):
    A.comment("weights load")
    VD=32; TRQ=40; TRO=44
    A(f"""v_and_b32 v60, 15, v0
    v_lshrrev_b32 v61, 4, v0
    v_and_b32 v62, 1, v61
    v_lshlrev_b32 v63, 4, v62
    v_lshrrev_b32 v64, 5, v0
    v_add_u32 v63, v63, v64
    v_lshlrev_b32 v63, 13, v63
    s_lshl_b32 s{S_T0}, s{S_H}, 8
    v_add_u32 v63, s{S_T0}, v63
    v_lshlrev_b32 v62, 1, v62
    v_xor_b32 v62, v60, v62""")
    for k in range(4):
        x = (4*(k&1)) ^ (8*((k>>1)&1))
        A(f"""v_xor_b32 v64, {x}, v62
        v_lshlrev_b32 v64, 4, v64
        v_add_u32 v{VD+k}, v63, v64""")
    A(f"""v_lshlrev_b32 v63, 10, v61
    s_lshl_b32 s{S_T0}, s{S_H}, 17
    s_lshl_b32 s{S_T1}, s{S_WV}, 8
    s_add_u32 s{S_T0}, s{S_T0}, s{S_T1}
    v_add_u32 v63, s{S_T0}, v63""")
    for k in range(4):
        x = (4*(k&1)) ^ (8*((k>>1)&1))
        A(f"""v_xor_b32 v64, {x}, v62
        v_lshlrev_b32 v64, 4, v64
        v_add_u32 v{VD+4+k}, v63, v64""")
    A(f"""v_bfe_u32 v64, v0, 2, 2
    v_and_b32 v65, 3, v0
    v_and_b32 v66, 1, v64
    v_lshrrev_b32 v67, 1, v64
    v_lshrrev_b32 v68, 1, v61
    v_and_b32 v69, 1, v61
    v_lshlrev_b32 v70, 4, v68
    v_lshlrev_b32 v71, 2, v69
    v_add_u32 v70, v70, v71
    v_lshlrev_b32 v71, 3, v67
    v_add3_u32 v70, v70, v71, v66
    v_lshlrev_b32 v70, 8, v70
    v_lshlrev_b32 v71, 1, v69
    v_lshlrev_b32 v72, 2, v67
    v_or3_b32 v71, v66, v71, v72
    v_lshlrev_b32 v71, 1, v71
    s_lshl_b32 s{S_T0}, s{S_WV}, 2
    v_lshrrev_b32 v72, 1, v65
    v_add_u32 v72, s{S_T0}, v72
    v_and_b32 v73, 1, v65
    v_lshlrev_b32 v73, 3, v73
    v_add_u32 v70, v70, v73
    v_xor_b32 v74, v72, v71
    v_lshlrev_b32 v74, 4, v74
    v_add_u32 v{TRQ}, v70, v74
    v_add_u32 v72, 2, v72
    v_xor_b32 v74, v72, v71
    v_lshlrev_b32 v74, 4, v74
    v_add_u32 v{TRQ+1}, v70, v74
    v_add_u32 v{TRQ+2}, 0x10000, v{TRQ}
    v_add_u32 v{TRQ+3}, 0x10000, v{TRQ+1}""")
    A(f"""v_lshlrev_b32 v70, 3, v68
    v_lshlrev_b32 v71, 4, v69
    v_add_u32 v70, v70, v71
    v_lshlrev_b32 v71, 2, v67
    v_add3_u32 v70, v70, v71, v66
    v_lshlrev_b32 v70, 8, v70
    v_add_u32 v70, v70, v73
    s_lshl_b32 s{S_T0}, s{S_WV}, 14
    v_add_u32 v70, s{S_T0}, v70
    v_lshlrev_b32 v71, 1, v67
    v_lshlrev_b32 v72, 2, v69
    v_or3_b32 v71, v66, v71, v72
    v_lshlrev_b32 v71, 1, v71
    v_lshrrev_b32 v72, 1, v65""")
    for u in range(8):
        A(f"""v_add_u32 v74, {2*u}, v72
        v_xor_b32 v74, v74, v71
        v_lshlrev_b32 v74, 4, v74
        v_add_u32 v{TRO+u}, v70, v74
        v_add_u32 v{TRO+8+u}, 0x10000, v{TRO+u}""")
    def srd(ka):
        A(f"""s_load_dwordx2 s[{S_W}:{S_W+1}], s[0:1], {ka}
        s_waitcnt lgkmcnt(0)
        s_mov_b32 s{S_W+2}, 0x400000
        s_mov_b32 s{S_W+3}, 0x20000""")
    def issue(kind, half, region):
        A(f"s_lshl_b32 s{S_T1}, s{S_WV}, 14")
        if kind=='qkv': A(f"s_lshl_b32 s{S_T2}, s{S_WV}, 19")
        for i in range(16):
            if kind == 'qkv':
                row = 256*half + 32*(i>>3) + ((2*i)&15)
                A(f"""s_add_u32 s{S_T0}, s{S_T2}, {row*8192}
                s_add_u32 m0, s{S_T1}, {region + 4*i*256}
                s_nop 0
                buffer_load_dwordx4 v{VD+(i&3)}, s[{S_W}:{S_W+3}], s{S_T0} offen lds""")
            else:
                k = (i&1) | (((i>>2)&1)<<1)
                A(f"""s_mov_b32 s{S_T0}, {(64*half + 4*i)*1024}
                s_add_u32 m0, s{S_T1}, {region + 4*i*256}
                s_nop 0
                buffer_load_dwordx4 v{VD+4+k}, s[{S_W}:{S_W+3}], s{S_T0} offen lds""")
    def read_qkv(half, region, dst):
        for T in range(2):
            for tl in range(4):
                t = 4*half + tl
                for j in range(4):
                    off = (64*tl + 32*(j>>1) + 2*(j&1))*256
                    base = TRQ+T + (2 if region else 0)
                    A(f"ds_read_b64_tr_b16 {dst(T,t,j)}, v{base} offset:{off}")
    def read_o(t, region):
        for u in range(8):
            for j in range(4):
                off = (32*(j>>1) + 2*(j&1))*256
                r = V_WO + (u*2 + t)*8 + 2*j
                A(f"ds_read_b64_tr_b16 {v(r,2)}, v{TRO+u+(8 if region else 0)} offset:{off}")
    RA, RB = 0, 65536
    dq = lambda T,t,j: a(A_WQ + (T*8+t)*8 + 2*j, 2)
    dk = lambda T,t,j: a(A_WK + (T*8+t)*8 + 2*j, 2)
    def W(n): A(f"s_waitcnt vmcnt({n})")
    def BAR(): A("s_waitcnt lgkmcnt(0)\ns_barrier")
    srd(KA['Wq']); issue('qkv',0,RA); issue('qkv',1,RB)
    W(16); A("s_barrier"); read_qkv(0,RA,dq); BAR()
    srd(KA['Wk']); issue('qkv',0,RA)
    W(16); A("s_barrier"); read_qkv(1,RB,dq); BAR()
    issue('qkv',1,RB)
    W(16); A("s_barrier"); read_qkv(0,RA,dk); BAR()
    srd(KA['Wo']); issue('o',0,RA)
    W(16); A("s_barrier"); read_qkv(1,RB,dk); BAR()
    issue('o',1,RB)
    W(16); A("s_barrier"); read_o(0,RA); BAR()
    srd(KA['Wv']); issue('qkv',0,RA)
    W(16); A("s_barrier"); read_o(1,RB); BAR()
    issue('qkv',1,RB)
    TV=64
    dv = lambda T,t,j: v(TV + (T*4+(t&3))*8 + 2*j, 2)
    for half, reg in ((0,RA),(1,RB)):
        W(16 if half==0 else 0); A("s_barrier"); read_qkv(half,reg,dv); BAR()
        A(f"""s_lshl_b32 s{S_T0}, s{S_WV}, 14
        s_add_u32 s{S_T0}, s{S_T0}, {reg}
        v_add_u32 v60, s{S_T0}, v{V_L16}""")
        for f in range(8):
            for q in range(2):
                A(f"ds_write_b128 v60, {v(TV+f*8+q*4,4)} offset:{f*2048+q*1024}")
        BAR()
    A(f"""s_lshl_b32 s{S_T0}, s{S_WV}, 14
    v_add_u32 v{V_WV}, s{S_T0}, v{V_L16}
    v_add_u32 v{V_WV2}, 0x10000, v{V_WV}""")

def gen_step(A, fast, diag=False, hist=False, lab="", P=None, hooks=None):
    P = P or {}; hooks = hooks or {}
    stm = "" if fast else "sc1"
    SRD = f"s[{S_WS}:{S_WS+3}]"
    K = Trk(A)
    def st(i):
        if isinstance(diag, tuple):
            if i==diag[0]: A("s_memtime s[62:63]")
            if i==diag[1]:
                A(f"""s_memtime s[60:61]
                s_waitcnt lgkmcnt(0)
                s_sub_u32 s64, s60, s62
                s_add_u32 s{S_ST}, s{S_ST}, s64""")
    seq = [(T,t) for t in range(8) for T in range(2)]
    vrd = {}
    def vread(k):
        T,t = seq[k]; b = V_WB + (k%3)*8
        base = V_WV if t<4 else V_WV2
        for q in range(2):
            vrd[k] = K.ds(f"ds_read_b128 {v(b+4*q,4)}, v{base} offset:{wv_off(T,t,q)&65535}")
    vstate = {'n':0}
    def vitem(n=1):
        for _ in range(n):
            k = vstate['n']
            if k>=16: return
            T,t = seq[k]; b = V_WB + (k%3)*8
            if k>=3: K.wl(vrd[k])
            A(f"v_smfmac_f32_16x16x64_bf16 {v(V_AV+4*T,4)}, {v(V_MA+4*t,4)}, {v(b,8)}, v{V_IDX}")
            if k+3<16: vread(k+3)
            vstate['n']+=1
    Q0=V_AQ; K0=V_AQ+4; Q1=V_AK; K1=V_AK+4
    G=V_MA
    st(60)
    A(f"L_gat{lab}:")
    if P.get('cnt'): A(f"s_add_u32 s{S_ST+1}, s{S_ST+1}, 1")
    A(f"""buffer_load_dwordx4 {v(G,4)}, v{V_L16}, {SRD}, s{S_GSLOT} offen sc1
    buffer_load_dwordx4 {v(G+4,4)}, v{V_L16}, {SRD}, s{S_GSLOT} offen offset:1024 sc1
    s_waitcnt vmcnt(0)
    ds_write_b128 v{V_MW}, {v(G,4)}
    ds_write_b128 v{V_MW}, {v(G+4,4)} offset:1024
    v_max3_u32 v{V_T}, v{G}, v{G+1}, v{G+2}
    v_max3_u32 v{V_T+1}, v{G+3}, v{G+4}, v{G+5}
    v_max3_u32 v{V_T}, v{V_T}, v{G+6}, v{G+7}
    v_max_u32 v{V_T}, v{V_T}, v{V_T+1}
    v_cmp_eq_u32 vcc, -1, v{V_T}""")
    A.auto=False; A(f"s_cbranch_vccnz L_gat{lab}"); A.auto=True
    st(0)
    A("s_waitcnt lgkmcnt(0)")
    st(61)
    A("s_barrier")
    st(62)
    ma=[K.ds(f"ds_read_b128 {v(V_MA+4*t,4)}, v{V_MR} offset:{1024*t}") for t in range(8)]
    st(1)
    kv=[]
    nvq=P.get('nvq',8)
    for t in range(8):
        K.wl(ma[t])
        for (acc,W,T) in [(Q0,A_WQ,0),(Q1,A_WQ,1),(K0,A_WK,0),(K1,A_WK,1)]:
            A(f"v_smfmac_f32_16x16x64_bf16 {v(acc,4)}, {v(V_MA+4*t,4)}, {a(W+(T*8+t)*8,8)}, v{V_IDX}")
            if T==0 and acc==Q0 and t<4 :
                kv.append(K.vm(f"buffer_load_dwordx4 {v(V_KX+4*t,4)}, v{V_L16}, {SRD}, s{S_KVN} offen offset:{1024*t} sc1"))
            if T==0 and acc==Q0 and t==4:
                A(f"s_add_u32 s{S_KVN}, s{S_KVN}, 0x80000")
                A(f"s_mov_b32 m0, {L_DUMP}")
                A(f"v_lshlrev_b32 v{V_T}, 3, v{V_L16}")
                K.vm(f"buffer_load_dword v{V_T}, {SRD}, s{S_KVN} offen sc1 lds")
        if vstate['n']<nvq and t<7: vitem(2)
    st(2)
    vitem(P.get('v0',1))
    A(f"""v_cvt_pk_bf16_f32 v{Q0}, v{Q0}, v{Q0+1}
    v_cvt_pk_bf16_f32 v{Q0+1}, v{Q0+2}, v{Q0+3}
    v_cvt_pk_bf16_f32 v{Q1}, v{Q1}, v{Q1+1}
    v_cvt_pk_bf16_f32 v{Q1+1}, v{Q1+2}, v{Q1+3}
    v_cvt_pk_bf16_f32 v{Q0+2}, v{K0}, v{K0+1}
    v_cvt_pk_bf16_f32 v{Q0+3}, v{K0+2}, v{K0+3}
    v_cvt_pk_bf16_f32 v{Q1+2}, v{K1}, v{K1+1}
    v_cvt_pk_bf16_f32 v{Q1+3}, v{K1+2}, v{K1+3}""")
    st(20)
    D0=K0; D1=K1
    A(f"""v_mfma_f32_16x16x32_bf16 {v(D0,4)}, {v(Q0,4)}, {v(V_BSEL,4)}, 0
    v_mfma_f32_16x16x32_bf16 {v(D1,4)}, {v(Q1,4)}, {v(V_BSEL,4)}, 0""")
    vitem(P.get('v1',1))
    QF=V_AQ
    A(f"""v_cvt_pk_bf16_f32 v{QF}, v{D0}, v{D0+1}
    v_cvt_pk_bf16_f32 v{QF+1}, v{D0+2}, v{D0+3}
    v_cvt_pk_bf16_f32 v{QF+2}, v{D1}, v{D1+1}
    v_cvt_pk_bf16_f32 v{QF+3}, v{D1+2}, v{D1+3}""")
    st(21)
    K.wv(kv[1])
    SX0=V_AK; SX1=V_AK+4; SX2=V_AQ+4
    A(f"""v_mfma_f32_16x16x32_bf16 {v(SX2,4)}, {v(QF,4)}, {v(QF,4)}, 0
    v_mfma_f32_16x16x32_bf16 {v(SX0,4)}, {v(V_KX,4)}, {v(QF,4)}, 0
    v_mfma_f32_16x16x32_bf16 {v(SX1,4)}, {v(V_KX+4,4)}, {v(QF,4)}, 0""")
    K.vm(f"buffer_store_dwordx4 {v(QF,4)}, v{V_KMA}, {SRD}, s{S_KMO} offen sc1")
    vitem(P.get('v2',0))
    st(23)
    for r in range(4):
        K.ds(f"ds_write_b32 v{V_SPM}, v{SX2+r} offset:{16*r}")
    K.ds(f"ds_write_b128 v{V_SPX0}, {v(SX0,4)}")
    wlast=K.ds(f"ds_write_b128 v{V_SPX1}, {v(SX1,4)}")
    vitem(P.get('v3',2))
    st(24)
    K.wl(wlast)
    st(25)
    A("s_barrier")
    st(4)
    XR=[V_KX, V_KX+4, V_AK, V_AK+4]; MR=V_AQ+4
    xr=[K.ds(f"ds_read_b128 {v(XR[w2],4)}, v{V_SPR} offset:{w2*1024}") for w2 in range(4)]
    mr=K.ds(f"ds_read_b128 {v(MR,4)}, v{V_SPR2}")
    vitem(P.get('v4',2))
    K.wl(mr)
    st(30)
    X=XR[0]
    if P.get('pk',1):
        A(f"""v_pk_add_f32 {v(XR[0],2)}, {v(XR[0],2)}, {v(XR[1],2)}
        v_pk_add_f32 {v(XR[2],2)}, {v(XR[2],2)}, {v(XR[3],2)}
        v_pk_add_f32 {v(XR[0]+2,2)}, {v(XR[0]+2,2)}, {v(XR[1]+2,2)}
        v_pk_add_f32 {v(XR[2]+2,2)}, {v(XR[2]+2,2)}, {v(XR[3]+2,2)}
        v_pk_add_f32 {v(MR,2)}, {v(MR,2)}, {v(MR+2,2)}
        v_pk_add_f32 {v(X,2)}, {v(X,2)}, {v(XR[2],2)}
        v_pk_add_f32 {v(X+2,2)}, {v(X+2,2)}, {v(XR[2]+2,2)}
        v_add_f32 v{MR}, v{MR}, v{MR+1}""")
    else:
        for j in range(4): A(f"v_add_f32 v{XR[0]+j}, v{XR[0]+j}, v{XR[1]+j}")
        for j in range(4): A(f"v_add_f32 v{XR[2]+j}, v{XR[2]+j}, v{XR[3]+j}")
        A(f"v_add_f32 v{MR}, v{MR}, v{MR+1}\nv_add_f32 v{MR+2}, v{MR+2}, v{MR+3}")
        for j in range(4): A(f"v_add_f32 v{X+j}, v{X+j}, v{XR[2]+j}")
        A(f"v_add_f32 v{MR}, v{MR}, v{MR+2}")
    MX=MR+1; TM=MR+2
    A(f"""v_max3_f32 v{MX}, v{X}, v{X+1}, v{X+2}
    v_max3_f32 v{MX}, v{MX}, v{X+3}, v{MR}""")
    vitem(P.get('v5',0))
    A(f"""v_max_f32_dpp v{MX}, v{MX}, v{MX} quad_perm:[2,3,0,1] row_mask:0xf bank_mask:0xf
    v_mov_b32 v{TM}, v{MX}""")
    vitem(P.get('v6',0))
    A(f"""v_permlane16_swap_b32 v{MX}, v{TM}
    v_max_f32 v{MX}, v{MX}, v{TM}
    v_mov_b32 v{TM}, v{MX}""")
    vitem(P.get('v7',0))
    A(f"""v_permlane32_swap_b32 v{MX}, v{TM}
    v_max_f32 v{MX}, v{MX}, v{TM}
    v_mul_f32 v{MX}, s{S_SC}, v{MX}""")
    st(31)
    for j in range(4): A(f"v_fma_f32 v{X+j}, v{X+j}, s{S_SC}, -v{MX}")
    A(f"v_fma_f32 v{MR}, v{MR}, s{S_SC}, -v{MX}")
    for j in range(4): A(f"v_exp_f32 v{X+j}, v{X+j}")
    A(f"v_exp_f32 v{MR}, v{MR}")
    PB=V_AQ; PM=V_T
    A(f"""v_cvt_pk_bf16_f32 v{PB}, v{X}, v{X+1}
    v_cvt_pk_bf16_f32 v{PB+1}, v{X+2}, v{X+3}
    v_mov_b32_dpp v{MR+1}, v{MR} quad_perm:[2,3,0,1] row_mask:0xf bank_mask:0xf
    v_mov_b32_dpp v{PB+2}, v{PB} quad_perm:[2,3,0,1] row_mask:0xf bank_mask:0xf
    v_mov_b32_dpp v{PB+3}, v{PB+1} quad_perm:[2,3,0,1] row_mask:0xf bank_mask:0xf
    v_cvt_pk_bf16_f32 v{PM}, v{MR}, v{MR+1}""")
    st(32)
    K.wv(kv[3])
    O0=V_KX; O1=V_KX+4; SUM=V_AK
    A(f"""v_mfma_f32_16x16x32_bf16 {v(SUM,4)}, {v(V_ONES,4)}, {v(PB,4)}, 0
    v_mov_b32 v{PM+1}, v{PM}
    v_mfma_f32_16x16x32_bf16 {v(O0,4)}, {v(V_VX,4)}, {v(PB,4)}, 0
    v_mov_b32 v{MR+1}, 0
    v_mfma_f32_16x16x32_bf16 {v(O1,4)}, {v(V_VX+4,4)}, {v(PB,4)}, 0""")
    A(f"v_mov_b32 v{MR}, v{PM}")
    vitem(16)
    st(33)
    A(f"v_mfma_f32_16x16x16_bf16 {v(SUM,4)}, {v(V_ONES,2)}, {v(MR,2)}, {v(SUM,4)}")
    A(f"""v_cvt_pk_bf16_f32 v{V_AV}, v{V_AV}, v{V_AV+1}
    v_cvt_pk_bf16_f32 v{V_AV+1}, v{V_AV+2}, v{V_AV+3}
    v_cvt_pk_bf16_f32 v{V_AV+2}, v{V_AV+4}, v{V_AV+5}
    v_cvt_pk_bf16_f32 v{V_AV+3}, v{V_AV+6}, v{V_AV+7}""")
    A(f"""v_mfma_f32_16x16x16_bf16 {v(O0,4)}, {v(V_AV,2)}, {v(PM,2)}, {v(O0,4)}
    v_mfma_f32_16x16x16_bf16 {v(O1,4)}, {v(V_AV+2,2)}, {v(PM,2)}, {v(O1,4)}""")
    RC=V_AQ+4
    A(f"v_rcp_f32 v{RC}, v{SUM}")
    K.vm(f"buffer_store_dwordx4 {v(V_AV,4)}, v{V_L16}, {SRD}, s{S_VMO} offen sc1")
    AC=V_MA
    for r in range(4): A(f"v_mov_b32 v{AC+r}, 0")
    for j in range(4): A(f"v_mul_f32 v{O0+j}, v{O0+j}, v{RC}")
    for j in range(4): A(f"v_mul_f32 v{O1+j}, v{O1+j}, v{RC}")
    OG=V_AK+4
    A(f"""v_cvt_pk_bf16_f32 v{OG}, v{O0}, v{O0+1}
    v_cvt_pk_bf16_f32 v{OG+1}, v{O0+2}, v{O0+3}
    v_cvt_pk_bf16_f32 v{OG+2}, v{O1}, v{O1+1}
    v_cvt_pk_bf16_f32 v{OG+3}, v{O1+2}, v{O1+3}""")
    ow=K.ds(f"ds_write_b128 v{V_OXW}, {v(OG,4)}")
    st(34)
    for r in range(4,18): A(f"v_mov_b32 v{AC+r}, 0")
    K.wl(ow)
    st(35)
    A("s_barrier")
    st(36)
    OA=V_AQ
    o0=K.ds(f"ds_read_b128 {v(OA,4)}, v{V_MR} offset:{L_OX-L_MEM}")
    o1=K.ds(f"ds_read_b128 {v(OA+4,4)}, v{V_MR} offset:{L_OX-L_MEM+1024}")
    for r in range(18,32): A(f"v_mov_b32 v{AC+r}, 0")
    PK=V_WB
    def fold(u):
        p=u>>2
        A(f"""v_add_f32 v{AC+4*u}, v{AC+4*u}, v{AC+4*u+2}
        v_add_f32 v{AC+4*u+1}, v{AC+4*u+1}, v{AC+4*u+3}
        v_cvt_pk_bf16_f32 v{PK+4*p+(u&3)}, v{AC+4*u}, v{AC+4*u+1}""")
    pst={}
    def pstore(p):
        A(f"v_and_or_b32 v{PK+4*p}, v{PK+4*p}, -2, s{S_TAG}")
        pst[p]=K.vm(f"buffer_store_dwordx4 {v(PK+4*p,4)}, v{V_PST}, {SRD}, s{S_PSTO if p==0 else S_PST1} offen {stm}")
    K.wl(o0)
    st(40)
    for u in range(8):
        for t in range(2):
            if u==0 and t==1: K.wl(o1)
            A(f"v_smfmac_f32_16x16x64_bf16 {v(AC+4*u,4)}, {v(OA+4*t,4)}, {v(V_WO+(u*2+t)*8,8)}, v{V_IDX}")
        if u>=2: fold(u-2)
        if u==5: pstore(0)
    fold(6); fold(7); pstore(1)
    st(6)
    for r in range(24): A(f"v_mov_b32 v{V_AQ+r}, 0")
    for k in range(3):
        T,t = seq[k]; b = V_WB + 8 + ((k)%3)*8 if False else V_WB + (k%3)*8
    for k in range(3):
        T,t = seq[k]; b = V_WB + (k%3)*8
        for q in range(2):
            A(f"ds_read_b128 {v(b+4*q,4)}, v{V_WV} offset:{wv_off(T,t,q)&65535}")
    for i in range(P.get('rdelay',0)): A("s_nop 15")
    st(45)
    RD=V_MA; RA=V_MA+8; TT=V_MA+12
    A(f"L_red{lab}:")
    if P.get('cnt'): A(f"s_add_u32 s{S_ST+2}, s{S_ST+2}, 1")
    A(f"""buffer_load_dwordx4 {v(RD,4)}, v{V_L16}, {SRD}, s{S_PLDO} offen sc1
    buffer_load_dwordx4 {v(RD+4,4)}, v{V_L16}, {SRD}, s{S_PLDO} offen offset:1024 sc1
    s_waitcnt vmcnt(1)
    v_mfma_f32_16x16x32_bf16 {v(RA,4)}, {v(RD,4)}, {v(V_RSEL,4)}, 0
    s_waitcnt vmcnt(0)
    v_mfma_f32_16x16x32_bf16 {v(RA,4)}, {v(RD+4,4)}, {v(V_RSEL,4)}, {v(RA,4)}
    v_bitop3_b32 v{TT}, v{RD}, v{RD+4}, s{S_TAGM} bitop3:0x7e
    v_and_b32 v{TT}, 1, v{TT}
    v_cmp_ne_u32 vcc, 0, v{TT}""")
    A.auto=False; A(f"s_cbranch_vccnz L_red{lab}"); A.auto=True
    st(52)
    A(f"""v_mov_b32 v{TT+1}, -1
    v_permlane32_swap_b32 v{RA}, v{RA+1}
    v_permlane32_swap_b32 v{RA+2}, v{RA+3}
    v_add_f32 v{RA}, v{RA}, v{RA+1}
    v_add_f32 v{RA+2}, v{RA+2}, v{RA+3}
    v_permlane16_swap_b32 v{RA}, v{RA+2}
    v_add_f32 v{RA}, v{RA}, v{RA+2}
    v_mov_b32_dpp v{RA+1}, v{RA} quad_perm:[2,3,0,1] row_mask:0xf bank_mask:0xf
    v_cvt_pk_bf16_f32 v{TT}, v{RA}, v{RA+1}
    v_min_u32 v{TT}, -2, v{TT}
    s_add_u32 s{S_T0}, s{S_PUBO}, s{S_PSLOT}
    buffer_store_dword v{TT}, v{V_PUB}, {SRD}, s{S_T0} offen {stm}
    s_add_u32 s{S_T1}, s{S_PUBO}, s{S_CSLOT}
    buffer_store_dword v{TT+1}, v{V_PUB}, {SRD}, s{S_T1} offen {stm}""")
    if hist:
        A(f"s_add_u32 s{S_T1}, s{S_PUBO}, s{S_HIST}")
        A(f"buffer_store_dword v{TT}, v{V_PUB}, {SRD}, s{S_T1} offen")
    st(53)
    for i in range(P.get('gdelay',0)): A("s_nop 15")
    st(7)

def gen_rec_main(A, fast=True, diag=False, hist=False, nsteps=64, lab="", P=None, prod=False, hooks=None):
    hooks = hooks or {}
    SRD = f"s[{S_WS}:{S_WS+3}]"
    gen_prologue_addrs(A)
    A(f"""v_mov_b32 v32, 0
    v_mov_b32 v33, 0
    v_mov_b32 v34, 0
    v_mov_b32 v35, 0
    buffer_store_dwordx4 v[32:35], v{V_L16}, {SRD}, s{S_PLDO} offen sc1
    buffer_store_dwordx4 v[32:35], v{V_L16}, {SRD}, s{S_PLDO} offen offset:1024 sc1""")
    A(f"""s_load_dwordx2 s[{S_W}:{S_W+1}], s[0:1], {KA['B_mem0']}
    s_mov_b32 s{S_W+2}, 8192
    s_mov_b32 s{S_W+3}, 0x20000
    v_and_b32 v36, 15, v0
    v_lshrrev_b32 v37, 4, v0
    v_and_b32 v38, 1, v36
    v_lshlrev_b32 v38, 10, v38
    v_lshrrev_b32 v39, 1, v36
    v_lshlrev_b32 v39, 5, v39
    v_and_b32 v40, 1, v37
    v_lshlrev_b32 v40, 1, v40
    v_lshrrev_b32 v37, 1, v37
    v_or_b32 v40, v40, v37
    v_lshlrev_b32 v40, 1, v40
    v_add3_u32 v38, v38, v39, v40
    s_lshr_b32 s{S_T0}, s{S_H}, 2
    s_lshl_b32 s{S_T0}, s{S_T0}, 7
    s_and_b32 s{S_T1}, s{S_H}, 3
    s_lshl_b32 s{S_T1}, s{S_T1}, 11
    s_add_u32 s{S_T0}, s{S_T0}, s{S_T1}
    s_lshl_b32 s{S_T1}, s{S_WV}, 3
    s_add_u32 s{S_T0}, s{S_T0}, s{S_T1}
    v_and_b32 v38, 0xfff, v38
    s_waitcnt lgkmcnt(0)
    buffer_load_ushort v41, v38, s[{S_W}:{S_W+3}], s{S_T0} offen
    buffer_load_ushort v42, v38, s[{S_W}:{S_W+3}], s{S_T0} offen offset:32
    v_mov_b32 v43, -1
    s_add_u32 s{S_T0}, s{S_PUBO}, 8192
    s_add_u32 s{S_T1}, s{S_PUBO}, 16384
    buffer_store_dword v43, v{V_PUB}, {SRD}, s{S_T0} offen sc1
    buffer_store_dword v43, v{V_PUB}, {SRD}, s{S_T1} offen sc1
    s_waitcnt vmcnt(2)
    v_lshlrev_b32 v42, 16, v42
    v_or_b32 v41, v41, v42
    v_min_u32 v41, -2, v41
    buffer_store_dword v41, v{V_PUB}, {SRD}, s{S_PUBO} offen sc1
    s_waitcnt vmcnt(0)
    s_barrier
    s_cmp_lg_u32 s{S_WV}, 0
    s_cbranch_scc1 L_noarr{lab}
    v_mov_b32 v32, 4
    v_mov_b32 v33, 1
    s_mov_b64 exec, 1
    global_atomic_add v32, v33, s[6:7]
    s_mov_b64 exec, -1
    L_noarr{lab}:""")
    gen_weights(A)
    A(f"""v_mov_b32 v32, 4
    L_wait32{lab}:
    global_load_dword v33, v32, s[6:7] sc1
    s_waitcnt vmcnt(0)
    v_cmp_gt_u32 vcc, 32, v33
    s_cbranch_vccnz L_wait32{lab}
    v_mov_b32 v32, 12
    global_load_dword v33, v32, s[6:7] sc1
    s_waitcnt vmcnt(0)
    v_readfirstlane_b32 s57, v33""")
    A(f"""s_mov_b32 s{S_STEP}, 0
    s_mov_b32 s{S_GSLOT}, s{S_GATO}
    s_mov_b32 s{S_PSLOT}, 8192
    s_mov_b32 s{S_CSLOT}, 0
    s_mov_b32 s{S_TAG}, 1
    s_mov_b32 s{S_TAGM}, -1
    s_mov_b32 s{S_SC}, 0x3e0293ee
    s_mov_b32 s{S_HIST}, {WS_HIST - WS_MEM + 8192}
    s_lshl_b32 s{S_T0}, s{S_H}, 11
    s_lshl_b32 s{S_T1}, s{S_WV}, 9
    s_add_u32 s{S_T0}, s{S_T0}, s{S_T1}
    s_add_u32 s{S_KMO}, s{S_T0}, {WS_KM}
    s_lshl_b32 s{S_T0}, s{S_H}, 12
    s_lshl_b32 s{S_T1}, s{S_WV}, 10
    s_add_u32 s{S_T0}, s{S_T0}, s{S_T1}
    s_add_u32 s{S_VMO}, s{S_T0}, {WS_VM}
    s_lshl_b32 s{S_T0}, s{S_H}, 14
    s_lshl_b32 s{S_T1}, s{S_WV}, 12
    s_add_u32 s{S_T0}, s{S_T0}, s{S_T1}
    s_add_u32 s{S_KVN}, s{S_T0}, {WS_KV}""")
    for r in range(24): A(f"v_mov_b32 v{V_AQ+r}, 0")
    seq = [(T,t) for t in range(8) for T in range(2)]
    for k in range(3):
        T,t = seq[k]; b = V_WB + (k%3)*8
        for q in range(2):
            A(f"ds_read_b128 {v(b+4*q,4)}, v{V_WV} offset:{wv_off(T,t,q)&65535}")
    def loop(fast_, lab_):
        A(f"L_step{lab_}:")
        gen_step(A, fast_, diag, hist, lab_, P, hooks)
        A(f"""s_add_u32 s{S_STEP}, s{S_STEP}, 1
        s_add_u32 s{S_GSLOT}, s{S_GATO}, s{S_PSLOT}
        s_mov_b32 s{S_CSLOT}, s{S_PSLOT}
        s_add_u32 s{S_PSLOT}, s{S_PSLOT}, 8192
        s_cmp_ge_u32 s{S_PSLOT}, 24576
        s_cselect_b32 s{S_PSLOT}, 0, s{S_PSLOT}
        s_xor_b32 s{S_TAG}, s{S_TAG}, 1
        s_not_b32 s{S_TAGM}, s{S_TAGM}
        s_add_u32 s{S_KMO}, s{S_KMO}, 0x10000
        s_add_u32 s{S_VMO}, s{S_VMO}, 0x20000
        s_add_u32 s{S_HIST}, s{S_HIST}, 8192
        s_cmp_lt_u32 s{S_STEP}, {nsteps}
        s_cbranch_scc1 L_step{lab_}""")
    if prod:
        A(f"""s_cmp_lg_u32 s57, 0
        s_cbranch_scc1 L_slowloop{lab}""")
        loop(True, lab+"f")
        A(f"s_branch L_recdone{lab}")
        A(f"L_slowloop{lab}:")
        loop(False, lab+"s")
        A(f"L_recdone{lab}:")
        A("s_waitcnt vmcnt(0)")
        return
    for i in range(16): A(f"s_mov_b32 s{S_ST+i}, 0")
    A("s_memtime s[60:61]\ns_waitcnt lgkmcnt(0)\ns_mov_b32 s63, s60\ns_mov_b32 s58, s60")
    loop(fast, lab)
    A(f"""s_memtime s[60:61]
    s_waitcnt lgkmcnt(0)
    s_sub_u32 s{S_ST+15}, s60, s58
    s_sub_u32 s{S_ST+14}, s58, s59
    s_lshl_b32 s{S_T0}, s{S_H}, 2
    s_add_u32 s{S_T0}, s{S_T0}, s{S_WV}
    s_lshl_b32 s{S_T0}, s{S_T0}, 6
    s_add_u32 s{S_T0}, s{S_T0}, {WS_STAMP}
    v_mov_b32 v32, s{S_T0}
    s_mov_b64 exec, 1""")
    for q in range(4):
        for r in range(4): A(f"v_mov_b32 v{36+r}, s{S_ST+4*q+r}")
        A(f"buffer_store_dwordx4 v[36:39], v32, {SRD}, 0 offen offset:{16*q}")
    A("s_mov_b64 exec, -1")
    A("s_waitcnt vmcnt(0)")

def gen_rec_standalone(name, fast=True, diag=False, hist=False, nsteps=64, xcd=0, P=None):
    A = Asm()
    A(f"""s_memtime s[60:61]
    s_cmp_ge_u32 s2, 256
    s_cbranch_scc1 L_end
    s_getreg_b32 s3, hwreg(HW_REG_XCC_ID)
    s_and_b32 s3, s3, 15
    s_cmp_lg_u32 s3, {xcd}
    s_cbranch_scc1 L_end
    s_load_dwordx2 s[6:7], s[0:1], {KA['dbg']}
    s_load_dwordx2 s[8:9], s[0:1], {KA['ws']}
    v_lshrrev_b32 v1, 6, v0
    v_and_b32 v0, 63, v0
    v_readfirstlane_b32 s{S_WV}, v1
    s_mov_b32 s10, {WS_SIZE}
    s_mov_b32 s11, 0x20000
    s_waitcnt lgkmcnt(0)
    s_mov_b32 s59, s60
    s_cmp_lg_u32 s{S_WV}, 0
    s_cbranch_scc1 L_norank
    v_mov_b32 v1, 0
    v_mov_b32 v2, 1
    s_mov_b64 exec, 1
    global_atomic_add v3, v1, v2, s[6:7] sc0
    s_waitcnt vmcnt(0)
    v_mov_b32 v1, {L_MISC}
    ds_write_b32 v1, v3
    s_mov_b64 exec, -1
    L_norank:
    s_waitcnt lgkmcnt(0)
    s_barrier
    v_mov_b32 v1, {L_MISC}
    ds_read_b32 v3, v1
    s_waitcnt lgkmcnt(0)
    v_readfirstlane_b32 s{S_H}, v3
    s_cmp_ge_u32 s{S_H}, 32
    s_cbranch_scc1 L_end
    s_barrier""")
    gen_rec_main(A, fast, diag, hist, nsteps, P=P)
    A("L_end:")
    return A
```

```python
from asmlib import *
from layout import *

S_WS=8
S_X=12
S_Q=16; S_K=20; S_V=24
S_WVID=28; S_RB=29; S_HH=30; S_KC=31; S_T0=32; S_T1=33; S_T2=34; S_XO=35; S_WO=36; S_BUF=37; S_M=38
V_XA0=1; V_XA1=2; V_WA0=3; V_WA1=4; V_DX=5; V_DW0=6; V_DW1=7; V_L16=8; V_TMP=10
ACC=64
A_X=0; A_W=64

def w1_setup(A):
    A(f"""s_load_dwordx2 s[{S_X}:{S_X+1}], s[0:1], {KA['B_x']}
    s_load_dwordx2 s[{S_Q}:{S_Q+1}], s[0:1], {KA['Wq']}
    s_load_dwordx2 s[{S_K}:{S_K+1}], s[0:1], {KA['Wk']}
    s_load_dwordx2 s[{S_V}:{S_V+1}], s[0:1], {KA['Wv']}
    s_mov_b32 s{S_X+2}, 0x200000
    s_mov_b32 s{S_X+3}, 0x20000
    s_mov_b32 s{S_Q+2}, 0x400000
    s_mov_b32 s{S_Q+3}, 0x20000
    s_mov_b32 s{S_K+2}, 0x400000
    s_mov_b32 s{S_K+3}, 0x20000
    s_mov_b32 s{S_V+2}, 0x400000
    s_mov_b32 s{S_V+3}, 0x20000
    v_and_b32 v20, 15, v0
    v_lshrrev_b32 v21, 4, v0
    v_lshlrev_b32 v{V_L16}, 4, v0""")
    A(f"""v_and_b32 v22, 7, v20
    v_xor_b32 v22, v22, v21
    v_lshlrev_b32 v22, 4, v22
    v_lshlrev_b32 v23, 7, v20
    v_add_u32 v{V_XA0}, v22, v23
    v_xor_b32 v{V_XA1}, 64, v{V_XA0}""")
    A(f"""v_bfe_u32 v22, v0, 2, 2
    v_lshlrev_b32 v23, 3, v21
    v_add_u32 v23, v23, v22
    v_lshlrev_b32 v23, 8, v23
    v_and_b32 v24, 1, v21
    v_lshlrev_b32 v24, 2, v24
    v_or_b32 v24, v24, v22
    v_lshlrev_b32 v24, 1, v24
    s_lshl_b32 s{S_T0}, s{S_WVID}, 2
    v_bfe_u32 v25, v0, 1, 1
    v_add_u32 v25, s{S_T0}, v25
    v_xor_b32 v25, v25, v24
    v_lshlrev_b32 v25, 4, v25
    v_and_b32 v26, 1, v0
    v_lshlrev_b32 v26, 3, v26
    v_add3_u32 v23, v23, v25, v26
    v_add_u32 v{V_WA0}, 16384, v23
    v_xor_b32 v{V_WA1}, 32, v{V_WA0}""")
    A(f"""v_lshrrev_b32 v22, 3, v0
    v_and_b32 v23, 7, v0
    v_xor_b32 v23, v23, v22
    v_lshlrev_b32 v23, 4, v23
    v_lshlrev_b32 v22, 10, v22
    v_add_u32 v{V_DX}, v22, v23
    v_and_b32 v22, 3, v21
    v_lshlrev_b32 v22, 1, v22
    v_xor_b32 v22, v22, v20
    v_lshlrev_b32 v23, 13, v21
    v_lshlrev_b32 v24, 4, v22
    v_add_u32 v{V_DW0}, v23, v24
    v_xor_b32 v{V_DW1}, 128, v{V_DW0}
    s_waitcnt lgkmcnt(0)""")

def w1_dma(A):
    A(f"""s_lshl_b32 s{S_T0}, s{S_KC}, 7
    s_add_u32 s{S_T0}, s{S_T0}, s{S_XO}
    s_lshl_b32 s{S_T1}, s{S_WVID}, 12
    s_add_u32 s{S_M}, s{S_T1}, s{S_BUF}""")
    for i in range(4):
        A(f"""s_add_u32 m0, s{S_M}, {i*1024}
        s_add_u32 s{S_T2}, s{S_T0}, {i*8192}
        buffer_load_dwordx4 v{V_DX}, s[{S_X}:{S_X+3}], s{S_T2} offen lds""")
    A(f"""s_lshl_b32 s{S_T0}, s{S_KC}, 19
    s_add_u32 s{S_T0}, s{S_T0}, s{S_WO}
    s_add_u32 s{S_M}, s{S_M}, 16384""")
    for mi,srd in enumerate((S_Q,S_K,S_V)):
        for i in range(4):
            A(f"""s_add_u32 m0, s{S_M}, {mi*16384 + i*1024}
            s_add_u32 s{S_T2}, s{S_T0}, {i*4*8192}
            buffer_load_dwordx4 v{V_DW0 if (i>>1)==0 else V_DW1}, s[{srd}:{srd+3}], s{S_T2} offen lds""")

def w1_reads(A, ks, par):
    xa = V_XA0 if ks==0 else V_XA1
    for tt in range(8):
        A(f"ds_read_b128 {a(A_X+par*32+4*tt,4)}, v{xa} offset:{tt*2048}")
    for mi in range(3):
        for T in range(2):
            for hh in range(2):
                off = mi*16384 + (32*ks+4*hh)*256
                A(f"ds_read_b64_tr_b16 {a(A_W+par*24+(mi*2+T)*4+2*hh,2)}, v{V_WA0 if T==0 else V_WA1} offset:{off}")

def w1_mfma(A, par):
    for tt in range(8):
        x = a(A_X+par*32+4*tt,4)
        for mi in range(3):
            for T in range(2):
                w = a(A_W+par*24+(mi*2+T)*4,4)
                acc = v(ACC+((mi*2+T)*8+tt)*4,4)
                if mi<2: A(f"v_mfma_f32_16x16x32_bf16 {acc}, {w}, {x}, {acc}")
                else:    A(f"v_mfma_f32_16x16x32_bf16 {acc}, {x}, {w}, {acc}")

def w1_item(A, lab):
    SRD=f"s[{S_WS}:{S_WS+3}]"
    A(f"""s_lshl_b32 s{S_XO}, s{S_RB}, 17
    s_lshl_b32 s{S_T0}, s{S_WVID}, 15
    s_add_u32 s{S_XO}, s{S_XO}, s{S_T0}
    s_lshl_b32 s{S_WO}, s{S_WVID}, 17
    s_lshl_b32 s{S_T0}, s{S_HH}, 8
    s_add_u32 s{S_WO}, s{S_WO}, s{S_T0}
    s_mov_b32 s{S_KC}, 0
    s_mov_b32 s{S_BUF}, 0
    s_barrier""")
    w1_dma(A)
    for r in range(192): A(f"v_mov_b32 v{ACC+r}, 0")
    A(f"L_w1c{lab}:")
    A(f"""s_waitcnt vmcnt(0)
    s_barrier
    s_add_u32 s{S_KC}, s{S_KC}, 1
    s_xor_b32 s{S_BUF}, s{S_BUF}, 0x10000
    s_cmp_ge_u32 s{S_KC}, 8
    s_cbranch_scc1 L_w1nd{lab}""")
    w1_dma(A)
    A(f"L_w1nd{lab}:")
    w1_reads(A,0,0)
    A("s_waitcnt lgkmcnt(0)")
    w1_reads(A,1,1)
    w1_mfma(A,0)
    A("s_waitcnt lgkmcnt(0)")
    w1_mfma(A,1)
    A(f"""v_xor_b32 v{V_XA0}, 0x10000, v{V_XA0}
    v_xor_b32 v{V_XA1}, 0x10000, v{V_XA1}
    v_xor_b32 v{V_WA0}, 0x10000, v{V_WA0}
    v_xor_b32 v{V_WA1}, 0x10000, v{V_WA1}
    s_cmp_lt_u32 s{S_KC}, 8
    s_cbranch_scc1 L_w1c{lab}""")
    A(f"""s_lshl_b32 s{S_T0}, s{S_RB}, 21
    s_lshl_b32 s{S_T1}, s{S_HH}, 14
    s_add_u32 s{S_T0}, s{S_T0}, s{S_T1}
    s_lshl_b32 s{S_T1}, s{S_WVID}, 12
    s_add_u32 s{S_T0}, s{S_T0}, s{S_T1}
    s_add_u32 s{S_XO}, s{S_T0}, {WS_KV}
    s_lshl_b32 s{S_T0}, s{S_RB}, 20
    s_lshl_b32 s{S_T1}, s{S_HH}, 13
    s_add_u32 s{S_T0}, s{S_T0}, s{S_T1}
    s_lshl_b32 s{S_T1}, s{S_WVID}, 11
    s_add_u32 s{S_T0}, s{S_T0}, s{S_T1}
    s_add_u32 s{S_WO}, s{S_T0}, {WS_Q}""")
    A.flush()
    tmp=V_TMP; n=0
    def accr(mi,T,tt): return ACC+((mi*2+T)*8+tt)*4
    def emit(regs, soff_expr, off):
        nonlocal n
        t = tmp + (n%4)*4; n+=1
        (p,q)=regs
        A(f"""v_cvt_pk_bf16_f32 v{t}, v{p}, v{p+1}
        v_cvt_pk_bf16_f32 v{t+1}, v{p+2}, v{p+3}
        v_cvt_pk_bf16_f32 v{t+2}, v{q}, v{q+1}
        v_cvt_pk_bf16_f32 v{t+3}, v{q+2}, v{q+3}
        buffer_store_dwordx4 {v(t,4)}, v{V_L16}, {SRD}, {soff_expr} offen offset:{off} sc1""")
    for sg in range(4):
        A(f"s_add_u32 s{S_T0}, s{S_XO}, {sg*0x80000}")
        A(f"s_add_u32 s{S_T1}, s{S_WO}, {sg*0x40000}")
        for X in range(2):
            tt=2*sg+X
            emit((accr(1,0,tt),accr(1,1,tt)), f"s{S_T0}", X*1024)
        for T in range(2):
            emit((accr(2,T,2*sg),accr(2,T,2*sg+1)), f"s{S_T0}", 2048+T*1024)
        for X in range(2):
            tt=2*sg+X
            emit((accr(0,0,tt),accr(0,1,tt)), f"s{S_T1}", X*1024)
```

```python
from asmlib import *
from layout import *
S_K=8; S_V=12; S_Q=16; S_H=20; S_O=24
S_WVID=28; S_IT=29; S_CH=30; S_T0=32; S_T1=33; S_T2=34; S_D=36
S_SH=52
CP=5184; HB=16*CP; HP=4160
V_T=0
V_TID=1
W0=16
KR=48
VR=68
KU=80
VU=120
TM=136

def srd(A, s, ka, nbytes):
    A(f"""s_load_dwordx2 s[{s}:{s+1}], s[0:1], {ka}
    s_mov_b32 s{s+2}, {nbytes}
    s_mov_b32 s{s+3}, 0x20000""")

def unpack(A, src, dst):
    A(f"""v_lshlrev_b32 v{dst}, 16, v{src}
    v_and_b32 v{dst+1}, 0xffff0000, v{src}""")

def w2_item(A, lab):
    srd(A,S_K,KA['A_k'],0x200000); srd(A,S_V,KA['A_v'],0x200000); srd(A,S_Q,KA['A_q'],0x200000)
    srd(A,S_H,KA['A_ssm'],0x200000); srd(A,S_O,KA['out'],0x400000); srd(A,S_SH,KA['A_shift'],4096)
    A("s_barrier")
    A(f"""v_mov_b32 v4, 0
    v_mov_b32 v5, 0
    v_mov_b32 v6, 0
    v_mov_b32 v7, 0
    v_lshrrev_b32 v8, 4, v1
    v_mul_u32_u24 v8, {CP}, v8
    v_and_b32 v9, 15, v1
    v_lshlrev_b32 v9, 6, v9
    v_add_u32 v8, v8, v9""")
    for i in range(4): A(f"ds_write_b128 v8, v[4:7] offset:{16*i}")
    A(f"""v_lshrrev_b32 v8, 2, v1
    v_mul_u32_u24 v8, {HP}, v8
    v_and_b32 v9, 3, v1
    v_lshlrev_b32 v9, 4, v9
    v_add_u32 v8, v8, v9
    v_add_u32 v8, {HB}, v8
    v_cmp_gt_u32 vcc, 32, v1
    s_and_saveexec_b64 s[56:57], vcc
    ds_write_b128 v8, v[4:7]
    s_mov_b64 exec, s[56:57]""")
    A(f"""s_waitcnt lgkmcnt(0)
    v_and_b32 v10, 1, v1
    v_lshlrev_b32 v11, 6, v10
    s_lshl_b32 s{S_T0}, s{S_IT}, 7""")
    for i in range(4): A(f"buffer_load_dwordx4 {v(KR+4*i,4)}, v11, s[{S_SH}:{S_SH+3}], s{S_T0} offen offset:{16*i}")
    A("s_waitcnt vmcnt(0)")
    for i in range(8):
        A(f"""v_lshlrev_b32 v{W0+0*8+i}, 16, v{KR+2*i}
        v_and_b32 v{W0+1*8+i}, 0xffff0000, v{KR+2*i}
        v_lshlrev_b32 v{W0+2*8+i}, 16, v{KR+2*i+1}
        v_and_b32 v{W0+3*8+i}, 0xffff0000, v{KR+2*i+1}""")
    srd(A,S_SH,KA['A_D'],1024)
    A(f"""s_waitcnt lgkmcnt(0)
    v_lshlrev_b32 v11, 1, v0
    s_lshl_b32 s{S_T0}, s{S_IT}, 5
    buffer_load_ushort v12, v11, s[{S_SH}:{S_SH+3}], s{S_T0} offen
    s_waitcnt vmcnt(0)
    v_lshlrev_b32 v12, 16, v12
    s_nop 1""")
    for i in range(16): A(f"v_readlane_b32 s{S_D+i}, v12, {i}")
    A(f"""v_lshrrev_b32 v11, 1, v1
    v_lshlrev_b32 v12, 11, v11
    v_lshlrev_b32 v13, 4, v10
    v_add_u32 v12, v12, v13
    s_lshl_b32 s{S_T0}, s{S_IT}, 5
    v_add_u32 v12, s{S_T0}, v12
    v_subrev_u32 v12, 3072, v12""")
    A(f"""v_bfe_u32 v13, v1, 1, 4
    v_lshlrev_b32 v13, 1, v13
    v_sub_u32 v13, 30, v13
    v_lshrrev_b32 v14, 5, v1
    v_add_u32 v14, 16, v14
    v_lshlrev_b32 v14, 5, v14
    v_add_u32 v13, v13, v14
    v_lshlrev_b32 v13, 1, v13
    v_mul_u32_u24 v14, {8*CP}, v10
    v_add_u32 v13, v13, v14""")
    for ps in range(8):
        for r in range(5):
            A(f"v_add_u32 v{TM+8+r}, {1024*r}, v12")
        for r in range(5):
            A(f"buffer_load_dwordx4 {v(KR+4*r,4)}, v{TM+8+r}, s[{S_K}:{S_K+3}], 0 offen")
        A(f"""buffer_load_dwordx4 {v(VR,4)}, v{TM+11}, s[{S_V}:{S_V+3}], 0 offen
        buffer_load_dwordx4 {v(VR+4,4)}, v{TM+12}, s[{S_V}:{S_V+3}], 0 offen
        s_waitcnt vmcnt(0)""")
        for r in range(5):
            for d in range(4): unpack(A, KR+4*r+d, KU+8*r+2*d)
        for r in range(2):
            for d in range(4): unpack(A, VR+4*r+d, VU+8*r+2*d)
        for i in range(8):
            a0=TM; a1=TM+1; p0=TM+14; p1=TM+15; pk=TM+2
            A(f"""v_mul_f32 v{a0}, v{KU+0+i}, v{W0+24+i}
            v_mul_f32 v{a1}, v{KU+8+i}, v{W0+24+i}
            v_cvt_pk_bf16_f32 v{pk}, v{a0}, v{a1}
            v_lshlrev_b32 v{a0}, 16, v{pk}
            v_and_b32 v{a1}, 0xffff0000, v{pk}""")
            for j,(r0,wj) in enumerate(((8,16),(16,8),(24,0))):
                A(f"""v_mul_f32 v{p0}, v{KU+r0+i}, v{W0+wj+i}
                v_mul_f32 v{p1}, v{KU+r0+8+i}, v{W0+wj+i}
                v_cvt_pk_bf16_f32 v{pk}, v{p0}, v{p1}
                v_lshlrev_b32 v{p0}, 16, v{pk}
                v_and_b32 v{p1}, 0xffff0000, v{pk}
                v_add_f32 v{a0}, v{a0}, v{p0}
                v_add_f32 v{a1}, v{a1}, v{p1}
                v_cvt_pk_bf16_f32 v{pk}, v{a0}, v{a1}
                v_lshlrev_b32 v{a0}, 16, v{pk}
                v_and_b32 v{a1}, 0xffff0000, v{pk}""")
            A(f"""v_mul_f32 v{a0}, v{a0}, v{VU+i}
            v_mul_f32 v{a1}, v{a1}, v{VU+8+i}
            v_cvt_pk_bf16_f32 v{TM+3+(i&3)}, v{a1}, v{a0}
            ds_write_b32 v13, v{TM+3+(i&3)} offset:{i*CP + ps*512}""")
        A(f"v_add_u32 v12, {256*1024}, v12")
    HL=160
    A(f"""v_lshlrev_b32 v2, 4, v1
    v_subrev_u32 v2, 16, v2
    v_lshlrev_b32 v3, 4, v1
    v_add_u32 v3, {HB+48}, v3""")
    A(f"""v_and_b32 v4, 15, v0
    v_lshrrev_b32 v5, 4, v0
    v_and_b32 v6, 7, v4
    v_mul_u32_u24 v6, {HP}, v6
    v_lshrrev_b32 v7, 3, v4
    v_add_u32 v7, v7, v5
    v_lshlrev_b32 v7, 4, v7
    s_and_b32 s{S_T0}, s{S_WVID}, 1
    s_lshl_b32 s{S_T0}, s{S_T0}, 5
    s_add_u32 s{S_T0}, s{S_T0}, {HB}
    v_add3_u32 v8, v6, v7, s{S_T0}""")
    A(f"""v_add_u32 v9, 1, v4
    v_lshlrev_b32 v9, 6, v9
    v_lshlrev_b32 v10, 4, v5
    v_add_u32 v9, v9, v10
    v_add_u32 v10, 16, v4
    v_lshlrev_b32 v10, 6, v10
    s_and_b32 s{S_T0}, s{S_WVID}, 1
    s_lshl_b32 s{S_T0}, s{S_T0}, 5
    s_sub_u32 s{S_T0}, 56, s{S_T0}
    v_lshlrev_b32 v11, 3, v5
    v_sub_u32 v11, s{S_T0}, v11
    v_add_u32 v10, v10, v11""")
    def hload():
        A(f"""s_lshl_b32 s{S_T0}, s{S_IT}, 16
        s_lshl_b32 s{S_T1}, s{S_CH}, 12
        s_add_u32 s{S_T0}, s{S_T0}, s{S_T1}
        v_add_u32 v12, s{S_T0}, v2""")
        A(f"""v_add_u32 v13, 16, v12
        buffer_load_dwordx4 {v(HL,4)}, v12, s[{S_H}:{S_H+3}], 0 offen
        buffer_load_dwordx4 {v(HL+4,4)}, v13, s[{S_H}:{S_H+3}], 0 offen""")
    def hbuild():
        A(f"""s_waitcnt vmcnt(0)
        v_cmp_eq_u32 vcc, 0, v1""")
        for d in range(4): A(f"v_cndmask_b32 v{HL+d}, v{HL+d}, 0, vcc")
        for c in range(8):
            s_=c+1
            if s_%2==0:
                m=s_//2
                if m%2==0 and m+3<=7:
                    A(f"ds_write_b128 v3, {v(HL+m,4)} offset:{c*HP}")
                else:
                    t=HL+8+(c&1)*4
                    for i in range(4): A(f"v_mov_b32 v{t+i}, v{HL+m+i}")
                    A(f"ds_write_b128 v3, {v(t,4)} offset:{c*HP}")
            else:
                m=(s_-1)//2; t=HL+8+(c&1)*4+8*0
                t=HL+16+((c>>1)&1)*4
                for i in range(4): A(f"v_alignbit_b32 v{t+i}, v{HL+m+i+1}, v{HL+m+i}, 16")
                A(f"ds_write_b128 v3, {v(t,4)} offset:{c*HP}")
    AC=200; KD=192; RA=208; RB=224; RC=240
    def conv(ctA, ctB, lab2):
        nA=16*(ctA+1); nB=16*(ctB+1)
        for (ct,acc) in ((ctA,AC),(ctB,AC+4)):
            A(f"ds_read_b64 {v(RA,2)}, v10 offset:{ct*1024}")
            A("s_waitcnt lgkmcnt(0)")
            A(f"""v_lshlrev_b32 v{acc+3}, 16, v{RA}
            v_and_b32 v{acc+2}, 0xffff0000, v{RA}
            v_lshlrev_b32 v{acc+1}, 16, v{RA+1}
            v_and_b32 v{acc}, 0xffff0000, v{RA+1}""")
            kd = KD + (acc-AC)
            for r in range(4): A(f"v_mul_f32 v{kd+r}, s58, v{acc+r}")
            A(f"""v_cvt_pk_bf16_f32 v{RA}, v{kd}, v{kd+1}
            v_cvt_pk_bf16_f32 v{RA+1}, v{kd+2}, v{kd+3}
            v_lshlrev_b32 v{kd}, 16, v{RA}
            v_and_b32 v{kd+1}, 0xffff0000, v{RA}
            v_lshlrev_b32 v{kd+2}, 16, v{RA+1}
            v_and_b32 v{kd+3}, 0xffff0000, v{RA+1}""")
            for r in range(4): A(f"v_mov_b32 v{acc+r}, 0")
        nl=[0]; ids={}
        def rd(k):
            A(f"ds_read_b128 {v(RA+(k&3)*4,4)}, v8 offset:{64*k}"); nl[0]+=1
            A(f"ds_read_b128 {v(RB+(k&3)*4,4)}, v9 offset:{(nA-1-k)*64}"); nl[0]+=1
            if k<nB:
                A(f"ds_read_b128 {v(RC+(k&3)*4,4)}, v9 offset:{(nB-1-k)*64}"); nl[0]+=1
            ids[k]=nl[0]
        for k in range(3): rd(k)
        for k in range(nA):
            if k+3<nA: rd(k+3)
            A(f"s_waitcnt lgkmcnt({min(15,nl[0]-ids[k])})")
            A(f"v_mfma_f32_16x16x32_bf16 {v(AC,4)}, {v(RA+(k&3)*4,4)}, {v(RB+(k&3)*4,4)}, {v(AC,4)}")
            if k<nB:
                A(f"v_mfma_f32_16x16x32_bf16 {v(AC+4,4)}, {v(RA+(k&3)*4,4)}, {v(RC+(k&3)*4,4)}, {v(AC+4,4)}")
    A(f"s_mov_b32 s{S_CH}, 0")
    hload()
    A("s_waitcnt lgkmcnt(0)\ns_barrier")
    A(f"L_w2ch{lab}:")
    hbuild()
    A("s_waitcnt lgkmcnt(0)\ns_barrier")
    A(f"""s_add_u32 s{S_CH}, s{S_CH}, 1
    s_cmp_ge_u32 s{S_CH}, 16
    s_cbranch_scc1 L_w2nh{lab}""")
    hload()
    A(f"L_w2nh{lab}:")
    A(f"""s_sub_u32 s{S_T0}, s{S_CH}, 1
    s_mov_b32 m0, s{S_T0}
    s_nop 0
    s_movrels_b32 s58, s{S_D}""")
    A(f"""s_cmp_ge_u32 s{S_WVID}, 2
    s_cbranch_scc1 L_w2v2{lab}""")
    conv(3,0,"a")
    A(f"""v_mov_b32 v14, 3072
    v_mov_b32 v15, 0
    s_branch L_w2j{lab}""")
    A(f"L_w2v2{lab}:")
    conv(2,1,"b")
    A(f"""v_mov_b32 v14, 2048
    v_mov_b32 v15, 1024""")
    A(f"L_w2j{lab}:")
    A.flush(); A("s_nop 7")
    for hh in range(2):
        ac=AC+4*hh; kd=KD+4*hh
        A(f"""v_cvt_pk_bf16_f32 v{RA}, v{ac}, v{ac+1}
        v_cvt_pk_bf16_f32 v{RA+1}, v{ac+2}, v{ac+3}
        v_lshlrev_b32 v{ac}, 16, v{RA}
        v_and_b32 v{ac+1}, 0xffff0000, v{RA}
        v_lshlrev_b32 v{ac+2}, 16, v{RA+1}
        v_and_b32 v{ac+3}, 0xffff0000, v{RA+1}""")
        for r in range(4): A(f"v_add_f32 v{ac+r}, v{ac+r}, v{kd+r}")
    A(f"""v_cvt_pk_bf16_f32 v{RA}, v{AC+3}, v{AC+2}
    v_cvt_pk_bf16_f32 v{RA+1}, v{AC+1}, v{AC}
    v_cvt_pk_bf16_f32 v{RA+2}, v{AC+7}, v{AC+6}
    v_cvt_pk_bf16_f32 v{RA+3}, v{AC+5}, v{AC+4}
    v_add_u32 v14, v14, v10
    v_add_u32 v15, v15, v10
    s_barrier
    ds_write_b64 v14, {v(RA,2)}
    ds_write_b64 v15, {v(RA+2,2)}
    v_add_u32 v9, {CP}, v9
    v_add_u32 v10, {CP}, v10
    s_cmp_lt_u32 s{S_CH}, 16
    s_cbranch_scc1 L_w2ch{lab}""")
    A("s_waitcnt lgkmcnt(0)\ns_barrier")
    A(f"""v_bfe_u32 v4, v0, 2, 2
    v_mul_u32_u24 v4, {CP}, v4
    v_and_b32 v5, 3, v0
    v_lshlrev_b32 v5, 3, v5
    v_lshrrev_b32 v6, 4, v0
    v_lshlrev_b32 v6, 5, v6
    v_add3_u32 v4, v4, v5, v6
    s_lshl_b32 s{S_T0}, s{S_WVID}, 7
    s_add_u32 s{S_T0}, s{S_T0}, 1024
    v_add_u32 v4, s{S_T0}, v4""")
    A(f"""v_lshrrev_b32 v5, 5, v0
    v_lshlrev_b32 v5, 5, v5
    v_and_b32 v6, 31, v0
    v_sub_u32 v6, 31, v6
    v_add_u32 v5, v5, v6
    s_lshl_b32 s{S_T0}, s{S_WVID}, 6
    v_add_u32 v5, s{S_T0}, v5
    v_lshlrev_b32 v6, 10, v5
    s_lshl_b32 s{S_T0}, s{S_IT}, 5
    v_add_u32 v6, s{S_T0}, v6
    v_lshlrev_b32 v7, 11, v5
    v_add_u32 v7, s{S_T0}, v7""")
    Z=32; QR=40; ZU=48; QU=64; OT=80
    for it in range(8):
        for c4 in range(4):
            A(f"ds_read_b64_tr_b16 {v(Z+2*c4,2)}, v4 offset:{c4*4*CP}")
        A(f"""buffer_load_dwordx4 {v(QR,4)}, v6, s[{S_Q}:{S_Q+3}], 0 offen
        buffer_load_dwordx4 {v(QR+4,4)}, v6, s[{S_Q}:{S_Q+3}], 0 offen offset:16
        s_waitcnt vmcnt(0) lgkmcnt(0)""")
        for d in range(8):
            unpack(A, Z+d, ZU+2*d); unpack(A, QR+d, QU+2*d)
        for j in range(16): A(f"v_mul_f32 v{ZU+j}, v{ZU+j}, v{QU+j}")
        for d in range(8): A(f"v_cvt_pk_bf16_f32 v{OT+d}, v{ZU+2*d}, v{ZU+2*d+1}")
        A(f"""buffer_store_dwordx4 {v(OT,4)}, v7, s[{S_O}:{S_O+3}], 0 offen
        buffer_store_dwordx4 {v(OT+4,4)}, v7, s[{S_O}:{S_O+3}], 0 offen offset:16
        v_add_u32 v6, {256*1024}, v6
        v_add_u32 v4, 512, v4
        s_nop 1
        v_add_u32 v7, {256*2048}, v7""")
        A("s_nop 1")
```

```python
from asmlib import *
from layout import *
S_WS=8
S_SEG=29; S_HH=30; S_T0=32; S_T1=33; S_T2=34; S_KVB=35; S_QB=36; S_KMB=37; S_VMB=38; S_SC=39
S_MK=40
V_L16=8; V_KMA=9; V_ONES=10
QF=16; KF=48; VF=80; KM=112; VM=128; SA=144; OA=168; TMP=200; PB=216; PM=220

def w3_setup(A):
    A(f"""v_lshlrev_b32 v{V_L16}, 4, v0
    v_and_b32 v20, 15, v0
    v_lshrrev_b32 v21, 4, v0
    v_lshrrev_b32 v22, 2, v20
    v_lshlrev_b32 v22, 1, v22
    v_and_b32 v23, 1, v20
    v_add_u32 v22, v22, v23
    v_lshlrev_b32 v22, 6, v22
    v_lshlrev_b32 v23, 4, v21
    v_add_u32 v{V_KMA}, v22, v23
    s_mov_b32 s{S_SC}, 0x3e0293ee""")
    for j in range(4): A(f"v_mov_b32 v{V_ONES+j}, 0x3f803f80")
    A(f"v_lshlrev_b32 v22, 2, v21")
    for r in range(4):
        A(f"""v_add_u32 v23, {r}, v22
        v_cmp_le_u32 s[{S_MK+2*r}:{S_MK+2*r+1}], v23, v20""")

def w3_bases(A):
    A(f"""s_lshl_b32 s{S_T0}, s{S_SEG}, 19
    s_lshl_b32 s{S_T1}, s{S_HH}, 14
    s_add_u32 s{S_T0}, s{S_T0}, s{S_T1}
    s_add_u32 s{S_KVB}, s{S_T0}, {WS_KV}
    s_lshr_b32 s{S_T0}, s{S_T0}, 1
    s_add_u32 s{S_QB}, s{S_T0}, {WS_Q}
    s_lshr_b32 s{S_T1}, s{S_T0}, 1
    s_add_u32 s{S_VMB}, s{S_T1}, {WS_VM}
    s_lshr_b32 s{S_T1}, s{S_T1}, 1
    s_add_u32 s{S_KMB}, s{S_T1}, {WS_KM}""")

def w3_load_x(A):
    SRD=f"s[{S_WS}:{S_WS+3}]"
    for w in range(4):
        A(f"s_add_u32 s{S_T0}, s{S_QB}, {w*2048}")
        A(f"s_add_u32 s{S_T1}, s{S_KVB}, {w*4096}")
        for X in range(2):
            A(f"buffer_load_dwordx4 {v(QF+(w*2+X)*4,4)}, v{V_L16}, {SRD}, s{S_T0} offen offset:{X*1024} sc1")
        for X in range(2):
            A(f"buffer_load_dwordx4 {v(KF+(w*2+X)*4,4)}, v{V_L16}, {SRD}, s{S_T1} offen offset:{X*1024} sc1")
        for T in range(2):
            A(f"buffer_load_dwordx4 {v(VF+(w*2+T)*4,4)}, v{V_L16}, {SRD}, s{S_T1} offen offset:{2048+T*1024} sc1")
def w3_load_m(A):
    SRD=f"s[{S_WS}:{S_WS+3}]"
    for w in range(4):
        A(f"buffer_load_dwordx4 {v(KM+w*4,4)}, v{V_KMA}, {SRD}, s{S_KMB} offen offset:{w*512} sc1")
    for w in range(4):
        A(f"buffer_load_dwordx4 {v(VM+w*4,4)}, v{V_L16}, {SRD}, s{S_VMB} offen offset:{w*1024} sc1")

def w3_compute(A):
    SRD=f"s[{S_WS}:{S_WS+3}]"
    tiles=[(0,'M'),(0,0),(1,'M'),(1,0),(1,1)]
    for w in range(4):
        for i,(Xq,kt) in enumerate(tiles):
            a_ = v(KM+w*4,4) if kt=='M' else v(KF+(w*2+kt)*4,4)
            c = "0" if w==0 else v(SA+4*i,4)
            A(f"v_mfma_f32_16x16x32_bf16 {v(SA+4*i,4)}, {a_}, {v(QF+(w*2+Xq)*4,4)}, {c}")
    NEG=TMP+15
    A(f"v_mov_b32 v{NEG}, 0xff800000")
    for Xq in range(2):
        Mt = SA + (0 if Xq==0 else 8)
        X0 = Mt+4; X1 = SA+16
        diag = X0 if Xq==0 else X1
        for r in range(4):
            A(f"v_cndmask_b32 v{diag+r}, v{NEG}, v{diag+r}, s[{S_MK+2*r}:{S_MK+2*r+1}]")
        MX=TMP; TM=TMP+1
        A(f"""v_max3_f32 v{MX}, v{Mt}, v{Mt+1}, v{X0}
        v_max3_f32 v{MX}, v{MX}, v{X0+1}, v{X0+2}
        v_max_f32 v{MX}, v{MX}, v{X0+3}""")
        if Xq==1:
            A(f"""v_max3_f32 v{MX}, v{MX}, v{X1}, v{X1+1}
            v_max3_f32 v{MX}, v{MX}, v{X1+2}, v{X1+3}""")
        A(f"""v_mov_b32 v{TM}, v{MX}
        v_permlane16_swap_b32 v{MX}, v{TM}
        v_max_f32 v{MX}, v{MX}, v{TM}
        v_mov_b32 v{TM}, v{MX}
        v_permlane32_swap_b32 v{MX}, v{TM}
        v_max_f32 v{MX}, v{MX}, v{TM}
        v_mul_f32 v{MX}, s{S_SC}, v{MX}""")
        vals=[Mt,Mt+1,X0,X0+1,X0+2,X0+3]+([X1,X1+1,X1+2,X1+3] if Xq==1 else [])
        for r in vals: A(f"v_fma_f32 v{r}, v{r}, s{S_SC}, -v{MX}")
        for r in vals: A(f"v_exp_f32 v{r}, v{r}")
        A(f"""v_cvt_pk_bf16_f32 v{PB}, v{X0}, v{X0+1}
        v_cvt_pk_bf16_f32 v{PB+1}, v{X0+2}, v{X0+3}""")
        if Xq==1:
            A(f"""v_cvt_pk_bf16_f32 v{PB+2}, v{X1}, v{X1+1}
            v_cvt_pk_bf16_f32 v{PB+3}, v{X1+2}, v{X1+3}""")
        else:
            A(f"v_mov_b32 v{PB+2}, 0\nv_mov_b32 v{PB+3}, 0")
        A(f"""v_cvt_pk_bf16_f32 v{PM}, v{Mt}, v{Mt+1}
        v_mov_b32 v{PM+1}, v{PM}
        v_mov_b32 v{PM+2}, v{PM}
        v_mov_b32 v{PM+3}, 0""")
        SUM=TMP+4
        A(f"v_mfma_f32_16x16x32_bf16 {v(SUM,4)}, {v(V_ONES,4)}, {v(PB,4)}, 0")
        for w in range(4):
            for T in range(2):
                A(f"v_mfma_f32_16x16x32_bf16 {v(OA+(w*2+T)*4,4)}, {v(VF+(w*2+T)*4,4)}, {v(PB,4)}, 0")
        A(f"v_mfma_f32_16x16x16_bf16 {v(SUM,4)}, {v(V_ONES,2)}, {v(PM+2,2)}, {v(SUM,4)}")
        for w in range(4):
            for T in range(2):
                A(f"v_mfma_f32_16x16x16_bf16 {v(OA+(w*2+T)*4,4)}, {v(VM+w*4+2*T,2)}, {v(PM,2)}, {v(OA+(w*2+T)*4,4)}")
        RC=TMP+2
        A(f"v_rcp_f32 v{RC}, v{SUM}")
        for w in range(4):
            o0=OA+(w*2)*4; o1=o0+4
            for j in range(8): A(f"v_mul_f32 v{o0+j}, v{o0+j}, v{RC}")
            t=TMP+8+(w&1)*4 if w<2 else TMP+8+(w&1)*4
            t=224+w*4
            A(f"""v_cvt_pk_bf16_f32 v{t}, v{o0}, v{o0+1}
            v_cvt_pk_bf16_f32 v{t+1}, v{o0+2}, v{o0+3}
            v_cvt_pk_bf16_f32 v{t+2}, v{o1}, v{o1+1}
            v_cvt_pk_bf16_f32 v{t+3}, v{o1+2}, v{o1+3}
            s_add_u32 s{S_T0}, s{S_QB}, {WS_O-WS_Q + w*2048}
            buffer_store_dwordx4 {v(t,4)}, v{V_L16}, {SRD}, s{S_T0} offen offset:{Xq*1024} sc1""")
```

```python
from asmlib import *
from layout import *
S_WS=8; S_W=12; S_OUT=16
S_WVID=28; S_CB=29; S_GRP=30; S_IT=31; S_T0=32; S_T1=33; S_T2=34; S_AB=35; S_M=36
V_L16=1; V_DW=2; V_TR=3; V_LB=4; V_RW=5; V_RR=6; V_OA=7
V_TRC=8
ACC=12; BB=28; AR=60
L_RED=131072
def wreg(hl,w,ct):
    i=(hl*4+w)*4+ct
    r=i*4
    return a(r,4) if r<256 else v(128+r-256,4)

def w4_setup_and_weights(A):
    A(f"""s_load_dwordx2 s[{S_W}:{S_W+1}], s[0:1], {KA['Wo']}
    s_load_dwordx2 s[{S_OUT}:{S_OUT+1}], s[0:1], {KA['out']}
    s_mov_b32 s{S_W+2}, 0x400000
    s_mov_b32 s{S_W+3}, 0x20000
    s_mov_b32 s{S_OUT+2}, 0x400000
    s_mov_b32 s{S_OUT+3}, 0x20000
    v_lshlrev_b32 v{V_L16}, 4, v0
    v_and_b32 v20, 15, v0
    v_lshrrev_b32 v21, 4, v0""")
    A(f"""v_lshrrev_b32 v22, 3, v0
    v_bfe_u32 v23, v0, 4, 2
    v_lshlrev_b32 v23, 1, v23
    v_and_b32 v24, 7, v0
    v_xor_b32 v23, v23, v24
    v_lshlrev_b32 v23, 4, v23
    v_lshlrev_b32 v22, 10, v22
    v_add_u32 v{V_DW}, v22, v23""")
    A(f"""v_bfe_u32 v22, v0, 2, 2
    v_lshlrev_b32 v23, 2, v21
    v_add_u32 v23, v23, v22
    v_lshrrev_b32 v24, 1, v23
    v_and_b32 v24, 3, v24
    v_lshlrev_b32 v24, 1, v24
    v_lshlrev_b32 v23, 7, v23
    v_and_b32 v25, 1, v0
    v_lshlrev_b32 v25, 3, v25
    v_add_u32 v23, v23, v25
    s_lshl_b32 s{S_T0}, s{S_WVID}, 15
    v_add_u32 v23, s{S_T0}, v23
    v_bfe_u32 v25, v0, 1, 1""")
    for ct in range(4):
        A(f"""v_add_u32 v26, {2*ct}, v25
        v_xor_b32 v26, v26, v24
        v_lshlrev_b32 v26, 4, v26
        v_add_u32 v{V_TRC+ct}, v23, v26""")
    A(f"""v_add_u32 v{V_LB}, s{S_T0}, v{V_L16}
    s_lshl_b32 s{S_T1}, s{S_WVID}, 12
    s_add_u32 s{S_T1}, s{S_T1}, {L_RED}
    v_add_u32 v{V_RW}, s{S_T1}, v{V_L16}
    s_lshl_b32 s{S_T1}, s{S_WVID}, 10
    s_add_u32 s{S_T1}, s{S_T1}, {L_RED}
    v_add_u32 v{V_RR}, s{S_T1}, v{V_L16}""")
    A(f"""v_lshlrev_b32 v22, 11, v20
    v_lshlrev_b32 v23, 3, v21
    s_lshl_b32 s{S_T1}, s{S_CB}, 7
    s_lshl_b32 s{S_T2}, s{S_WVID}, 5
    s_add_u32 s{S_T1}, s{S_T1}, s{S_T2}
    s_add_u32 s{S_T1}, s{S_T1}, 1024
    v_add3_u32 v{V_OA}, v22, v23, s{S_T1}
    s_waitcnt lgkmcnt(0)""")
    def issue(hl, slot):
        A(f"""s_lshl_b32 s{S_T0}, s{S_WVID}, 20
        s_lshl_b32 s{S_T1}, s{S_CB}, 7
        s_add_u32 s{S_T0}, s{S_T0}, s{S_T1}
        s_add_u32 s{S_T0}, s{S_T0}, {hl*131072}
        s_lshl_b32 s{S_M}, s{S_WVID}, 15
        s_add_u32 s{S_M}, s{S_M}, {slot*16384}""")
        for i in range(16):
            A(f"""s_add_u32 m0, s{S_M}, {i*1024}
            s_add_u32 s{S_T2}, s{S_T0}, {i*8192}
            buffer_load_dwordx4 v{V_DW}, s[{S_W}:{S_W+3}], s{S_T2} offen lds""")
    def read(slot, dst):
        for w in range(4):
            for ct in range(4):
                for j in range(2):
                    off = slot*16384 + (32*w+16*j)*128
                    A(f"ds_read_b64_tr_b16 {dst(w,ct,j)}, v{V_TRC+ct} offset:{off}")
    def sub(regstr, j):
        k=regstr[0]; lo=int(regstr[2:].split(':')[0]); return f"{k}[{lo+2*j}:{lo+2*j+1}]"
    issue(0,0); issue(1,1)
    for hl in range(6):
        A("s_waitcnt vmcnt(16)")
        read(hl&1, lambda w,ct,j: sub(wreg(hl,w,ct),j))
        A("s_waitcnt lgkmcnt(0)")
        issue(hl+2, hl&1)
    for hl in (6,7):
        A("s_waitcnt vmcnt(16)" if hl==6 else "s_waitcnt vmcnt(0)")
        read(hl&1, lambda w,ct,j: v(AR+(w*4+ct)*4+2*j,2))
        A("s_waitcnt lgkmcnt(0)")
        for f in range(16):
            A(f"ds_write_b128 v{V_LB}, {v(AR+f*4,4)} offset:{(hl&1)*16384+f*1024}")
        A("s_waitcnt lgkmcnt(0)")

def w4_item(A, lab, pre=None):
    SRD=f"s[{S_WS}:{S_WS+3}]"
    A(f"""s_lshr_b32 s{S_T0}, s{S_IT}, 1
    s_lshl_b32 s{S_T0}, s{S_T0}, 18
    s_and_b32 s{S_T1}, s{S_IT}, 1
    s_lshl_b32 s{S_T1}, s{S_T1}, 10
    s_add_u32 s{S_T0}, s{S_T0}, s{S_T1}
    s_lshl_b32 s{S_T1}, s{S_WVID}, 16
    s_add_u32 s{S_T0}, s{S_T0}, s{S_T1}
    s_add_u32 s{S_AB}, s{S_T0}, {WS_O}""")
    nv=[0]; ld={}
    def aload(hl,w):
        slot=(hl*4+w)%16
        A(f"s_add_u32 s{S_T0}, s{S_AB}, {hl*8192+w*2048}")
        A(f"buffer_load_dwordx4 {v(AR+slot*4,4)}, v{V_L16}, {SRD}, s{S_T0} offen sc1")
        nv[0]+=1; ld[(hl,w)]=nv[0]
    for hl in range(4):
        for w in range(4): aload(hl,w)
    nl=[0]; bl={}
    def bread(hl,w):
        s_=(w&1)
        for ct in range(4):
            A(f"ds_read_b128 {v(BB+s_*16+ct*4,4)}, v{V_LB} offset:{(hl&1)*16384+(w*4+ct)*1024}")
            nl[0]+=1
        bl[(hl,w)]=nl[0]
    for hl in range(8):
        for w in range(4):
            if hl>=6:
                if (hl,w)==(6,0): bread(6,0)
                nxt=(hl,w+1) if w<3 else (hl+1,0)
                if nxt[0]<8: bread(*nxt)
                A(f"s_waitcnt lgkmcnt({nl[0]-bl[(hl,w)]})")
            A(f"s_waitcnt vmcnt({nv[0]-ld[(hl,w)]})")
            slot=(hl*4+w)%16
            for ct in range(4):
                b = wreg(hl,w,ct) if hl<6 else v(BB+(w&1)*16+ct*4,4)
                c = "0" if (hl,w)==(0,0) else v(ACC+ct*4,4)
                A(f"v_mfma_f32_16x16x32_bf16 {v(ACC+ct*4,4)}, {b}, {v(AR+slot*4,4)}, {c}")
            if hl<4: aload(hl+4,w)
    A("s_barrier")
    for ct in range(4):
        A(f"ds_write_b128 v{V_RW}, {v(ACC+ct*4,4)} offset:{ct*1024}")
    A("s_waitcnt lgkmcnt(0)\ns_barrier")
    for w in range(4):
        A(f"ds_read_b128 {v(BB+w*4,4)}, v{V_RR} offset:{w*4096}")
    A("s_waitcnt lgkmcnt(0)")
    for j in range(4):
        A(f"""v_add_f32 v{BB+j}, v{BB+j}, v{BB+4+j}
        v_add_f32 v{BB+8+j}, v{BB+8+j}, v{BB+12+j}""")
    for j in range(4): A(f"v_add_f32 v{BB+j}, v{BB+j}, v{BB+8+j}")
    A(f"""v_cvt_pk_bf16_f32 v{BB}, v{BB}, v{BB+1}
    v_cvt_pk_bf16_f32 v{BB+1}, v{BB+2}, v{BB+3}
    s_lshl_b32 s{S_T0}, s{S_IT}, 15
    buffer_store_dwordx2 {v(BB,2)}, v{V_OA}, s[{S_OUT}:{S_OUT+3}], s{S_T0} offen""")
```

```python
import sys
sys.path.insert(0,'gen')
from asmlib import *
from layout import *
from kfile import *
import rec3, elect
from build_w1 import w1_kernel
from build_w2 import w2_kernel
from build_w3 import w3_kernel
from build_w4 import w4_kernel
def rec_kernel(force_slow=False, P=None):
    A=Asm()
    elect.gen_elect(A, rec3.L_MISC, rec3.S_WV, "R", "L_endR", force_slow)
    rec3.gen_rec_main(A, prod=True, P=P or {'rdelay':2,'gdelay':4})
    A("L_endR:")
    return A
HEADER = open('concat_heads__ssm_conv_h3__memory_aug_recurrent_mem_tr__prompt.s.ref').read().split("; Override launch")[0]
def build(path, force_slow=False):
    ks=[("w1_kernel",w1_kernel()),("rec_kernel",rec_kernel(force_slow)),("w3_kernel",w3_kernel()),("w4_kernel",w4_kernel()),("w2_kernel",w2_kernel())]
    build_file(path, ks, [("w1_kernel",512,256,131072),("rec_kernel",256,256,163840),("w3_kernel",512,256,0),("w4_kernel",64,256,163840),("w2_kernel",32,256,163840)], header=HEADER)
if __name__=="__main__":
    build('list1.s'); build('list1slow.s', True)
    print("ok")
```
